```python
import torch

def _softmax(x, axis=-1):
    return torch.softmax(x, dim=axis)
def _gelu(x):
    return torch.nn.functional.gelu(x, approximate="tanh")
def _silu(x):
    return torch.nn.functional.silu(x)
def _sigmoid(x):
    return torch.sigmoid(x)
def _layernorm(x, axis=-1, eps=1e-5):
    m = x.mean(dim=axis, keepdim=True)
    v = x.var(dim=axis, keepdim=True, unbiased=False)
    return (x - m) / torch.sqrt(v + eps)
def _scatter_add(tgt, idx, src, axis=0):
    return tgt.clone().index_add_(axis, idx, src)
def _segment_sum(src, seg, n):
    out = torch.zeros((n,) + src.shape[1:], dtype=src.dtype)
    return out.index_add_(0, seg, src)
def _pad(x, pw):
    flat = tuple(v for pair in reversed(pw) for v in pair)
    return torch.nn.functional.pad(x, flat)

kernel_name = 'standalone__mha_block_cached__near_ridge'

def setup_inputs():

    _w = (lambda a: (lambda t: t.to(torch.bfloat16) if t.is_floating_point() else t)(torch.as_tensor(a)))
    B, Sq, D = 8, 240, 512
    H, Sk, Dh = 32, 1024, 128
    return {
        "x": _w((lambda *s: torch.randn(*s, dtype=torch.bfloat16) * 0.8)(B, Sq, D)),
        "k_cache": _w((lambda *s: torch.randn(*s, dtype=torch.bfloat16) * 0.8)(B, H, Sk, Dh)),
        "v_cache": _w((lambda *s: torch.randn(*s, dtype=torch.bfloat16) * 0.05)(B, H, Sk, Dh)),
        "wq": _w((lambda *s: torch.randn(*s, dtype=torch.bfloat16) * 0.8)(D, H * Dh) * (D ** -0.5)),
        "wo": _w((lambda *s: torch.randn(*s, dtype=torch.bfloat16) * 0.05)(H * Dh, D) * ((H * Dh) ** -0.5)),
    }

def reference(x, k_cache, v_cache, wq, wo):
    B, Sq, D = x.shape
    H, Dh = 32, 128
    q = (lambda x, *d: x.permute(*d))((x @ wq).reshape(B, Sq, H, Dh), 0, 2, 1, 3)
    scores = torch.einsum("bhqd,bhkd->bhqk", q, k_cache) * (Dh ** -0.5)
    p = _softmax(scores, axis=-1)
    o = torch.einsum("bhqk,bhkd->bhqd", p, v_cache)
    return (lambda x, *d: x.permute(*d))(o, 0, 2, 1, 3).reshape(B, Sq, H * Dh) @ wo
```

```python
KNAME = "standalone__mha_block_cached__near_ridge_kernel"

class Asm:
    def __init__(self):
        self.lines = []
    def __call__(self, s):
        for l in s.strip("\n").split("\n"):
            self.lines.append("    " + l.strip())
    def label(self, name):
        self.lines.append(name + ":")
    def raw(self, s):
        self.lines.append(s)
    def text(self):
        return "\n".join(self.lines) + "\n"

def kernel_begin(a, name):
    a.raw(".text")
    a.raw(f".globl {name}")
    a.raw(".p2align 8")
    a.raw(f".type {name},@function")
    a.label(name)

def kernel_desc(a, name, vgpr, accum, sgpr=102):
    a.raw('.section .rodata,"a"')
    a.raw(".p2align 6")
    a.raw(f".amdhsa_kernel {name}")
    a.raw(f"  .amdhsa_next_free_vgpr {vgpr}")
    a.raw(f"  .amdhsa_next_free_sgpr {sgpr}")
    a.raw(f"  .amdhsa_accum_offset {accum}")
    a.raw("  .amdhsa_group_segment_fixed_size 0")
    a.raw("  .amdhsa_kernarg_size 64")
    a.raw("  .amdhsa_user_sgpr_count 2")
    a.raw("  .amdhsa_user_sgpr_kernarg_segment_ptr 1")
    a.raw("  .amdhsa_system_sgpr_workgroup_id_x 1")
    a.raw(".end_amdhsa_kernel")
```

```python
import re

def regs_of(op):
    op = op.strip()
    m = re.fullmatch(r"-?(?:abs\()?([vas])\[(\d+):(\d+)\]\)?", op)
    if m: return [(m.group(1), i) for i in range(int(m.group(2)), int(m.group(3)) + 1)]
    m = re.fullmatch(r"-?(?:abs\()?([vas])(\d+)\)?", op)
    if m: return [(m.group(1), int(m.group(2)))]
    if op == "vcc": return [("s", "vcc")]
    if op == "exec": return [("s", "exec")]
    if op == "m0": return [("s", "m0")]
    return []

TRANS = ("v_exp_", "v_log_", "v_rcp_", "v_rsq_", "v_sqrt_", "v_sin_", "v_cos_")

class I:
    def __init__(s, text):
        s.text = text
        t = text.split(";")[0].strip()
        parts = t.split(None, 1)
        s.op = parts[0]
        ops = [o.strip() for o in parts[1].split(",")] if len(parts) > 1 else []
        if ops:
            last = ops[-1].split()
            s.mods = last[1:]
            ops[-1] = last[0] if last else ""
        else: s.mods = []
        s.ops = ops
        op = s.op
        s.mfma = op.startswith("v_mfma") or op.startswith("v_smfmac")
        s.valu = op.startswith("v_") and not s.mfma
        s.trans = op.startswith(TRANS)
        s.vmem = op.startswith(("buffer_", "global_"))
        s.ds = op.startswith("ds_")
        s.salu = op.startswith("s_")
        s.w, s.r = [], []
        R = [regs_of(o) for o in ops]
        if s.mfma:
            s.w = R[0]; s.a = R[1]; s.b = R[2]; s.c = R[3]; s.r = R[1] + R[2] + R[3]
            s.passes = 8 if "32x32" in op else 4
        elif op.startswith("v_permlane") and "swap" in op:
            s.w = R[0] + R[1]; s.r = R[0] + R[1]
        elif op.startswith("v_cmp"):
            s.w = R[0]; s.r = sum(R[1:], [])
        elif op.startswith(("v_add_co", "v_addc_co", "v_sub_co")):
            s.w = R[0] + R[1]; s.r = sum(R[2:], [])
        elif s.valu:
            s.w = R[0]; s.r = sum(R[1:], [])
            if op.startswith(("v_fmac", "v_dot2c")): s.r += R[0]
            if op.startswith("v_cndmask") and len(ops) == 3: s.r += [("s", "vcc")]
        elif s.vmem:
            if "lds" in s.mods or op.startswith("global_load_lds"):
                s.r = sum(R, []) + [("s", "m0")]
            elif "store" in op or "atomic" in op:
                s.r = sum(R, []); s.data = R[0] if op.startswith("buffer") else R[1]
            elif op.startswith(("buffer_wbl2", "buffer_inv")): pass
            else:
                s.w = R[0]; s.r = sum(R[1:], [])
        elif s.ds:
            if "write" in op or "add" in op: s.r = sum(R, [])
            else: s.w = R[0]; s.r = sum(R[1:], [])
        elif s.salu:
            if op.startswith(("s_cmp", "s_cbranch", "s_branch", "s_waitcnt", "s_barrier", "s_nop", "s_endpgm", "s_setprio", "s_sleep")):
                s.r = sum(R, [])
            else:
                s.w = R[0] if R else []; s.r = sum(R[1:], [])
        s.states = 1
        if op == "s_nop": s.states = int(ops[0]) + 1

def need(p, c):
    n = 0
    W = set(p.w)
    vW = {x for x in W if x[0] in "va"}
    if p.mfma:
        full = 8 if p.passes == 4 else 12
        if c.mfma:
            if vW & set(c.a + c.b): n = max(n, full)
            ov = vW & set(c.c)
            if ov and not (p.w == c.c and p.passes == c.passes): n = max(n, full - 2)
            if (vW & set(c.w)) and not ov: n = max(n, 0)
        elif c.valu or c.vmem or c.ds:
            if vW & (set(c.r) | set(c.w)): n = max(n, full)
        if c.valu and set(p.c) & set(c.w): n = max(n, 3 if p.passes == 4 else 7)
    elif p.valu:
        if c.mfma and vW & set(c.r): n = max(n, 2)
        if p.trans and c.valu and not c.trans and vW & set(c.r): n = max(n, 1)
        if p.trans and (c.vmem or c.ds) and vW & set(c.r): n = max(n, 1)
        if c.op.startswith("v_permlane") and vW & set(c.r): n = max(n, 2)
        if c.op.startswith(("v_readlane", "v_readfirstlane")) and vW & set(c.r): n = max(n, 1)
        sW = {x for x in W if x[0] == "s"}
        if sW:
            if c.vmem and sW & set(c.r): n = max(n, 5)
            if c.valu and sW & set(c.r): n = max(n, 2)
            if c.mfma and ("s", "exec") in sW: n = max(n, 4)
    elif p.salu:
        if ("s", "m0") in W and c.vmem and ("s", "m0") in c.r: n = max(n, 1)
    elif p.vmem and hasattr(p, "data") and ("x4" in p.op or "x3" in p.op):
        if set(p.data) & set(c.w): n = max(n, 2 if c.valu else 1)
    return n

def check(lines):
    ins, labels = [], {}
    for l in lines:
        t = l.split(";")[0].strip()
        if not t or t.startswith("."): continue
        if t.endswith(":"):
            labels[t[:-1]] = len(ins); continue
        ins.append(I(t))
    probs = set()
    WIN = 14
    def succ(k):
        op = ins[k].op
        out = []
        if op == "s_endpgm": return out
        if op.startswith(("s_cbranch", "s_branch")):
            out.append(labels[ins[k].ops[0]])
            if op == "s_branch": return out
        if k + 1 < len(ins): out.append(k + 1)
        return out
    for k, p in enumerate(ins):
        if not (p.w or hasattr(p, "data") or p.mfma): continue
        stack = [(n, 0) for n in succ(k)]
        seen = set()
        while stack:
            j, d = stack.pop()
            if (j, d) in seen or d >= WIN or j >= len(ins): continue
            seen.add((j, d))
            c = ins[j]
            n = need(p, c)
            if n > d: probs.add(f"need {n} have {d}: [{k}] {p.text}  ->  [{j}] {c.text}")
            for nn in succ(j): stack.append((nn, d + c.states))
    return sorted(probs, key=lambda s: int(re.search(r"\[(\d+)\]", s).group(1)))
```

```python
import sys, struct, math
from asm import *
import hazard

K1 = KNAME
K2 = "oproj_kernel"
STAMP = "--stamp" in sys.argv

def f2u(x): return struct.unpack("<I", struct.pack("<f", x))[0]
def vr(b, n=4): return f"v[{b}:{b+n-1}]"
def ar(b, n=4): return f"a[{b}:{b+n-1}]"
def mfma(d, a, b, c): return f"v_mfma_f32_16x16x32_bf16 {d}, {a}, {b}, {c}"

KA, VA, DK, DV, XA, WA, DX, DW = 16, 20, 28, 32, 34, 36, 44, 46
Q0, ACC = 48, 112
def Q(t, qb): return Q0 + 16 * qb + 4 * t
def AC(db, qb): return ACC + 16 * db + 4 * qb
def S(kb, qb): return 112 + 8 * qb + 4 * kb
def P(par, qb): return 144 + 16 * par + 4 * qb
def CI(qb): return 176 + 4 * qb
def O(db, qb): return 16 * db + 4 * qb
def L(qb): return 128 + 4 * qb
ONES = 144
def KF(kb, t): return 160 + 16 * kb + 4 * t
def VF(db): return 192 + 4 * db
def AF(f, db): return 160 + 32 * f + 4 * db
def BF(f, qb): return 224 + 16 * f + 4 * qb
SX, SW, SK, SV, SO = 20, 24, 28, 32, 36
sW, sB, sH = 40, 41, 42
sXO, sWO = 44, 52
sKo, sVo, mK, mV, sC, sT, sFB = 56, 57, 58, 59, 60, 61, 62
XBUF = [32768, 131072, 65536]
WBUF = [114688, 98304, 16384]
GRAY = [0, 1, 3, 2]

def srd(a, d, lo, hi, nrec):
    a(f"s_mov_b32 s{d}, {lo}"); a(f"s_mov_b32 s{d+1}, {hi}")
    a(f"s_mov_b32 s{d+2}, {nrec}"); a(f"s_mov_b32 s{d+3}, 0x20000")

def dma(voff, s, soff, off): return f"buffer_load_dwordx4 v{voff}, s[{s}:{s+3}], s{soff} offen offset:{off} lds"

def stage_dma(s):
    o = []
    bx, bw = XBUF[s % 3], WBUF[s % 3]
    for jj in range(8):
        if jj % 4 == 0: o.append(f"s_add_u32 m0, s63, {bx + (jj // 4) * 4096}")
        o.append(dma(DX + (jj & 1), SX, sXO + jj, (jj & 3) * 1024))
    o.append(f"s_add_u32 m0, s64, {bw}")
    for jj in range(4): o.append(dma(DW + (jj >> 1), SW, sWO + jj, jj * 1024))
    o += [f"s_add_u32 s{SX}, s{SX}, 128", f"s_addc_u32 s{SX+1}, s{SX+1}, 0",
          f"s_add_u32 s{SW}, s{SW}, 0x80000", f"s_addc_u32 s{SW+1}, s{SW+1}, 0"]
    return o
def k_tile_dma(T):
    o = [f"s_add_u32 m0, s64, {GRAY[T % 4] * 16384}", f"s_add_u32 s65, s64, {T * 16384}"]
    return o + [dma(DK + jj, SK, 65, jj * 1024) for jj in range(4)]
def v_tile_dma(T):
    o = [f"s_add_u32 m0, s64, {65536 + GRAY[T % 4] * 16384}", f"s_add_u32 s66, s64, {T * 16384}"]
    return o + [dma(DV + (jj & 1), SV, 66, jj * 1024) for jj in range(4)]

def kread(step, n):
    kb, t = n >> 2, n & 3
    return f"ds_read_b128 {ar(KF(kb, t))}, v{KA + t} offset:{step * 8192 + kb * 4096}"
def vread(step, n):
    db, u = n >> 1, n & 1
    return f"ds_read_b64_tr_b16 {ar(VF(db) + 2 * u, 2)}, v{VA + db} offset:{step * 8192 + u * 4096}"

def emit_gaps(a, mf, fill):
    for g, m in enumerate(mf):
        for p in fill.get(("pre", g), []): a(p)
        a(m)
        for p in fill.get(g, []): a(p)

def spread(fill, items, gaps):
    assert len(items) <= len(gaps), (len(items), len(gaps))
    for it, g in zip(items, gaps): fill.setdefault(g, []).append(it)

def stamp(a, idx):
    if not STAMP: return
    a("s_memrealtime s[70:71]"); a("s_memtime s[72:73]"); a("s_waitcnt lgkmcnt(0)")
    a("v_mov_b32 v250, s70"); a("v_mov_b32 v251, s72"); a("v_mov_b32 v252, s74")
    a(f"buffer_store_dwordx2 v[250:251], v252, s[76:79], 0 offen offset:{idx * 8}")

def sm_pos(e): return 11 + 2 * e + (e >> 3)
def sm_exp(e): r = S((e >> 2) & 1, e >> 3) + (e & 3); return f"v_exp_f32 v{r}, v{r}"
def sm_cvt(e, par):
    r = S((e >> 2) & 1, e >> 3) + (e & 3)
    return f"v_cvt_pk_bf16_f32 v{P(par, e >> 3) + ((e >> 1) & 3)}, v{r-1}, v{r}"

def attn_iter(a, odd):
    par = odd
    mf = []
    for g in range(32):
        qb, kb, t = g >> 3, (g >> 2) & 1, g & 3
        mf.append(mfma(vr(S(kb, qb)), ar(KF(kb, t)), vr(Q(t, qb)), vr(CI(qb)) if t == 0 else vr(S(kb, qb))))
    for qb in range(4):
        for db in range(8): mf.append(mfma(ar(O(db, qb)), ar(VF(db)), vr(P(par, qb)), ar(O(db, qb))))
        mf.append(mfma(ar(L(qb)), ar(ONES), vr(P(par, qb)), ar(L(qb))))
    valu = {}
    slots = {g: 2 for g in range(68)}
    for e in range(32):
        p = sm_pos(e); pp = 1 - par
        if p >= 68: p -= 68; pp = par
        valu.setdefault(p, []).append(sm_exp(e)); slots[p] -= 2
        if e & 1:
            c = sm_pos(e) + 1; pp = 1 - par
            if c >= 68: c -= 68; pp = par
            valu.setdefault(c, []).append(sm_cvt(e, pp)); slots[c] -= 1
    def free(lo, hi, per=2):
        out = []
        for g in range(lo, hi): out += [g] * min(per, slots[g])
        return out
    def take(items, gaps):
        assert len(gaps) >= len(items), (items, gaps)
        for it, g in zip(items, gaps):
            slots[g] -= 1
            (mem if it.startswith(("ds_", "buffer_", "s_")) else valu).setdefault(g, []).append(it)
    mem = {}
    take([vread(odd, n) for n in range(16)], free(1, 31))
    take([kread(odd, n) for n in range(8)], free(33, 60, 1))
    if not odd:
        take([f"v_xor_b32 v{KA + t}, s{sC}, v{KA + t}" for t in range(4)], free(20, 31))
        d = [f"s_mov_b32 m0, s{mK}"] + [dma(DK + jj, SK, sKo, jj * 1024) for jj in range(4)] + \
            [f"s_add_u32 s{sKo}, s{sKo}, 0x4000", f"s_xor_b32 s{mK}, s{mK}, s{sC}", f"s_cmp_eq_u32 s{sT}, 15"]
        take(d, free(43, 67, 1))
    else:
        take([f"v_xor_b32 v{VA + db}, s{sC}, v{VA + db}" for db in range(8)], free(33, 67, 1))
        d = [f"s_mov_b32 m0, s{mV}"] + [dma(DV + (jj & 1), SV, sVo, jj * 1024) for jj in range(4)] + \
            [f"s_add_u32 s{sVo}, s{sVo}, 0x4000"]
        take(d, free(24, 67, 1))
    fill = {g: mem.get(g, []) + valu.get(g, []) for g in range(68)}
    fill[("pre", 32)] = ["s_waitcnt lgkmcnt(0)"]
    fill[("pre", 0)] = ["s_waitcnt lgkmcnt(0)"] if odd else ["s_waitcnt vmcnt(16) lgkmcnt(0)", "s_barrier"]
    if odd:
        fill[67] += [f"s_xor_b32 s{sC}, s{sC}, 0xc000", f"s_xor_b32 s{mV}, s{mV}, s{sC}", f"s_add_u32 s{sT}, s{sT}, 1"]
    emit_gaps(a, mf, fill)

def xlane(a, op, x, y):
    a(f"v_mov_b32 v{y}, v{x}"); a("s_nop 1"); a(f"v_permlane16_swap_b32 v{x}, v{y}"); a("s_nop 0")
    a(f"{op} v{x}, v{x}, v{y}")
    a(f"v_mov_b32 v{y}, v{x}"); a("s_nop 1"); a(f"v_permlane32_swap_b32 v{x}, v{y}"); a("s_nop 0")
    a(f"{op} v{x}, v{x}, v{y}")

def qk_plain(a):
    for g in range(32):
        qb, kb, t = g >> 3, (g >> 2) & 1, g & 3
        a(mfma(vr(S(kb, qb)), ar(KF(kb, t)), vr(Q(t, qb)), "0" if t == 0 else vr(S(kb, qb))))

def gen_k1(a):
    kernel_begin(a, K1)
    a(f"""
    s_cmp_ge_u32 s2, 256
    s_cbranch_scc1 L1_end
    s_load_dwordx16 s[4:19], s[0:1], 0
    v_lshrrev_b32 v1, 6, v0
    v_and_b32 v2, 63, v0
    v_readfirstlane_b32 s{sW}, v1
    s_and_b32 s3, s2, 1
    s_lshl_b32 s3, s3, 2
    s_bfe_u32 s{sB}, s2, 0x20003
    s_add_u32 s{sB}, s{sB}, s3
    s_bfe_u32 s3, s2, 0x20001
    s_lshl_b32 s3, s3, 3
    s_lshr_b32 s{sH}, s2, 5
    s_add_u32 s{sH}, s{sH}, s3
    s_lshl_b32 s63, s{sW}, 13
    s_lshl_b32 s64, s{sW}, 12
    """)
    a("""
    v_lshrrev_b32 v3, 4, v2
    v_and_b32 v4, 15, v2
    v_bfe_u32 v5, v2, 2, 2
    v_and_b32 v6, 3, v2
    v_lshrrev_b32 v7, 3, v2
    v_and_b32 v8, 7, v2
    """)
    for jj in range(4):
        a(f"v_add_u32 v9, {4*jj}, v3"); a("v_xor_b32 v9, v9, v4"); a("v_lshlrev_b32 v9, 4, v9")
        a(f"v_lshl_add_u32 v{DK+jj}, v3, 8, v9")
    for p in range(2):
        a(f"v_add_u32 v9, {4*p}, v3"); a("v_lshlrev_b32 v10, 1, v9"); a("v_xor_b32 v10, v10, v4"); a("v_lshlrev_b32 v10, 4, v10")
        a(f"v_lshl_add_u32 v{DV+p}, v3, 8, v10")
        a(f"v_lshl_add_u32 v{DW+p}, v3, 13, v10")
        a("v_xor_b32 v10, v9, v8"); a("v_lshlrev_b32 v10, 4, v10")
        a(f"v_lshl_add_u32 v{DX+p}, v7, 10, v10")
    a("s_waitcnt lgkmcnt(0)")
    a(f"""
    s_mul_i32 s3, s{sB}, 245760
    s_add_u32 s4, s4, s3
    s_addc_u32 s5, s5, 0
    s_lshl_b32 s3, s{sH}, 8
    s_add_u32 s10, s10, s3
    s_addc_u32 s11, s11, 0
    s_lshl_b32 s3, s{sB}, 5
    s_add_u32 s3, s3, s{sH}
    s_lshl_b32 s3, s3, 18
    s_add_u32 s6, s6, s3
    s_addc_u32 s7, s7, 0
    s_add_u32 s8, s8, s3
    s_addc_u32 s9, s9, 0
    """)
    srd(a, SX, "s4", "s5", 244864); srd(a, SW, "s10", "s11", 516352)
    srd(a, SK, "s6", "s7", 262144); srd(a, SV, "s8", "s9", 262144)
    a(f"s_lshl_b32 s3, s{sW}, 16")
    for jj in range(8): a(f"s_add_u32 s{sXO+jj}, s3, {(jj >> 2) * 32768 + (jj & 3) * 7168}")
    a(f"s_lshl_b32 s3, s{sW}, 17")
    for jj in range(4): a(f"s_add_u32 s{sWO+jj}, s3, {jj * 31744}")
    for i in stage_dma(0): a(i); (a("s_nop 0") if " m0," in i else None)
    for i in k_tile_dma(0): a(i)
    for s in (1, 2):
        for i in stage_dma(s): a(i); (a("s_nop 0") if " m0," in i else None)
    a(f"""
    s_lshl_b32 s3, s{sB}, 2
    s_add_u32 s3, s3, s{sW}
    s_lshl_b32 s3, s3, 5
    s_add_u32 s3, s3, s{sH}
    s_lshl_b32 s3, s3, 14
    s_add_u32 s66, s18, s3
    s_addc_u32 s67, s19, 0
    """)
    srd(a, SO, "s66", "s67", 16384)
    if STAMP:
        a("s_add_u32 s66, s18, 0x2000000"); a("s_addc_u32 s67, s19, 0")
        srd(a, 76, "s66", "s67", 0x100000)
        a(f"s_lshl_b32 s74, s2, 2"); a(f"s_add_u32 s74, s74, s{sW}"); a("s_lshl_b32 s74, s74, 8")
    for t in range(4):
        a(f"v_add_u32 v9, {4*t}, v3"); a("v_xor_b32 v9, v9, v4"); a("v_lshlrev_b32 v9, 4, v9")
        a(f"v_lshl_add_u32 v{KA+t}, v4, 8, v9")
    a("v_lshl_add_u32 v11, v3, 2, v5")
    a("v_and_b32 v12, 7, v11")
    a("v_lshlrev_b32 v13, 3, v6")
    a("v_lshl_add_u32 v11, v11, 8, v13")
    a("v_add_u32 v11, 0x10000, v11")
    for db in range(8):
        a(f"v_xor_b32 v9, {db}, v12"); a(f"v_lshl_add_u32 v{VA+db}, v9, 5, v11")
    a("v_lshl_add_u32 v11, v3, 3, v5")
    a("v_lshl_add_u32 v11, v11, 8, v13")
    a(f"v_add_u32 v11, {WBUF[0]}, v11")
    a("v_and_b32 v12, 1, v3"); a("v_lshl_add_u32 v12, v12, 2, v5")
    for db in range(8):
        a(f"v_xor_b32 v9, {db}, v12"); a(f"v_lshl_add_u32 v{WA+db}, v9, 5, v11")
    a("v_lshrrev_b32 v12, 1, v4")
    a(f"s_add_u32 s3, s63, {XBUF[0]}")
    a("v_lshlrev_b32 v11, 7, v4"); a("v_add_u32 v11, s3, v11")
    for t in range(2):
        a(f"v_add_u32 v9, {4*t}, v3"); a("v_xor_b32 v9, v9, v12"); a(f"v_lshl_add_u32 v{XA+t}, v9, 4, v11")
    a("v_lshlrev_b32 v15, 4, v2")
    a(f"s_mov_b32 s{sFB}, 0")
    stamp(a, 0)
    def qreads(n):
        f, t = n & 1, n & 1
        o = []
        for db in range(8):
            for v in range(2): o.append(f"ds_read_b64_tr_b16 {ar(AF(f, db) + 2 * v, 2)}, v{WA+db} offset:{t * 8192 + v * 1024}")
        xb = [f"ds_read_b128 {ar(BF(f, qb))}, v{XA+t} offset:{qb * 2048}" for qb in range(4)]
        return xb + o
    a("s_waitcnt vmcnt(28)" if not STAMP else "s_waitcnt vmcnt(29)")
    a("s_barrier")
    for i in qreads(0): a(i)
    zinit = [f"v_accvgpr_write_b32 a{r}, 0" for r in range(144)] + [f"v_accvgpr_write_b32 a{ONES+r}, v14" for r in range(4)]
    a("v_mov_b32 v14, 0x3f803f80")
    for n in range(16):
        f, s = n & 1, n >> 1
        mf = [mfma(vr(AC(db, qb)), ar(AF(f, db)), ar(BF(f, qb)), "0" if n == 0 else vr(AC(db, qb)))
              for db in range(8) for qb in range(4)]
        fill = {("pre", 0): ["s_waitcnt lgkmcnt(0)"]}
        if n & 1 == 0:
            spread(fill, qreads(n + 1), list(range(0, 20)))
            z, zinit = zinit[:19], zinit[19:]
            spread(fill, z, list(range(8, 32)))
        elif n < 15:
            fill[("pre", 0)] = ["s_waitcnt vmcnt(12) lgkmcnt(0)", "s_barrier"]
            dx = (XBUF[(s + 1) % 3] - XBUF[s % 3]) & 0xffffffff
            dw = (WBUF[(s + 1) % 3] - WBUF[s % 3]) & 0xffffffff
            upd = [f"v_add_u32 v{XA+t}, {dx:#x}, v{XA+t}" for t in range(2)] + [f"v_add_u32 v{WA+db}, {dw:#x}, v{WA+db}" for db in range(8)]
            spread(fill, upd, [0, 0, 1, 1, 2, 2, 3, 3, 4, 4])
            spread(fill, qreads(n + 1), list(range(5, 25)))
            if s + 3 <= 7: d = stage_dma(s + 3)
            elif s == 5: d = k_tile_dma(1) + v_tile_dma(0) + v_tile_dma(1)
            else: d = k_tile_dma(2) + k_tile_dma(3) + v_tile_dma(2)
            spread(fill, d, list(range(5, 32)))
        else:
            spread(fill, [kread(0, k) for k in range(8)], list(range(4, 12)))
        emit_gaps(a, mf, fill)
    assert not zinit
    stamp(a, 1)
    cs = f2u(math.log2(math.e) / math.sqrt(128.0))
    a(f"s_mov_b32 s66, {cs:#x}"); a(f"s_mov_b32 s67, {cs:#x}")
    a("s_nop 4")
    for qb in range(4):
        for db in range(8):
            for i in range(2): a(f"v_pk_mul_f32 {vr(AC(db, qb) + 2*i, 2)}, {vr(AC(db, qb) + 2*i, 2)}, s[66:67]")
        for db in range(8):
            for i in range(2): a(f"v_cvt_pk_bf16_f32 v{Q(db >> 1, qb) + 2*(db & 1) + i}, v{AC(db, qb) + 2*i}, v{AC(db, qb) + 2*i + 1}")
        for sw in ("32", "16"):
            for t in range(4):
                for i in range(2): a(f"v_permlane{sw}_swap_b32 v{Q(t, qb) + i}, v{Q(t, qb) + 2 + i}")
    a.label("L1_attn")
    a(f"""
    s_mov_b32 s{sC}, 0x4000
    s_mov_b32 s{sT}, 0
    s_add_u32 s{sKo}, s64, 0x10000
    s_add_u32 s{sVo}, s64, 0xc000
    s_mov_b32 s{mK}, s64
    s_add_u32 s{mV}, s64, {65536 + GRAY[3] * 16384}
    s_waitcnt lgkmcnt(0)
    """)
    qk_plain(a)
    for k in range(8): a(kread(1, k))
    a(f"s_cmp_lg_u32 s{sFB}, 0"); a("s_cbranch_scc1 L1_havemax")
    for qb in range(4):
        s0, s1 = S(0, qb), S(1, qb)
        a(f"v_max3_f32 v1, v{s0}, v{s0+1}, v{s0+2}"); a(f"v_max3_f32 v1, v1, v{s0+3}, v{s1}")
        a(f"v_max3_f32 v1, v1, v{s1+1}, v{s1+2}"); a(f"v_max_f32 v1, v1, v{s1+3}")
        xlane(a, "v_max_f32", 1, 9)
        for r in range(4): a(f"v_sub_f32 v{CI(qb)+r}, 0, v1")
    a.label("L1_havemax")
    for qb in range(4):
        for r in range(8): a(f"v_add_f32 v{S(0, qb)+r}, v{S(0, qb)+r}, v{CI(qb)}")
    pro = []
    for e in range(32):
        if sm_pos(e) < 68: pro.append((sm_pos(e), sm_exp(e)))
        if e & 1 and sm_pos(e) + 1 < 68: pro.append((sm_pos(e) + 100, sm_cvt(e, 0)))
    for _, i in sorted(pro): a(i)
    stamp(a, 2)
    a.raw(".p2align 6")
    a.label("L1_loop")
    attn_iter(a, 0)
    a("s_cbranch_scc1 L1_tail")
    attn_iter(a, 1)
    a("s_branch L1_loop")
    a.label("L1_tail")
    for n in range(16): a(vread(1, n))
    for e in range(32):
        if sm_pos(e) >= 68: a(sm_exp(e))
    for e in range(32):
        if e & 1 and sm_pos(e) + 1 >= 68: a(sm_cvt(e, 1))
    a("s_waitcnt lgkmcnt(0)")
    for qb in range(4):
        a(mfma(ar(L(qb)), ar(ONES), vr(P(1, qb)), ar(L(qb))))
        for db in range(8): a(mfma(ar(O(db, qb)), ar(VF(db)), vr(P(1, qb)), ar(O(db, qb))))
    stamp(a, 3)
    a("s_mov_b32 s3, 0x4f800000")
    for qb in range(4): a(f"v_accvgpr_read_b32 v{4+qb}, a{L(qb)}")
    for qb in range(4): a(f"v_cmp_nge_f32 s[{66+2*qb}:{67+2*qb}], s3, v{4+qb}")
    for qb in range(4): a(f"v_rcp_f32 v{4+qb}, v{4+qb}")
    a("s_or_b64 s[66:67], s[66:67], s[68:69]"); a("s_or_b64 s[70:71], s[70:71], s[72:73]")
    a("s_or_b64 s[66:67], s[66:67], s[70:71]")
    a("s_cselect_b32 s3, 1, 0")
    a(f"s_lshl_b32 s65, s{sW}, 2"); a("s_add_u32 s65, s65, 0x20000")
    a("v_mov_b32 v1, s3"); a("v_mov_b32 v9, s65"); a("ds_write_b32 v9, v1")
    k = 0
    for qb in range(4):
        for s in range(4):
            t0 = 192 + 8 * (k % 4); d0 = 224 + 4 * (k % 4); k += 1
            for j in range(8): a(f"v_accvgpr_read_b32 v{t0+j}, a{O(2*s + (j >> 2), qb) + (j & 3)}")
            for j in range(8): a(f"v_mul_f32 v{t0+j}, v{t0+j}, v{4+qb}")
            for j in range(4): a(f"v_cvt_pk_bf16_f32 v{d0+j}, v{t0+2*j}, v{t0+2*j+1}")
            a(f"s_mov_b32 s3, {(s * 4 + qb) * 1024}")
            a(f"buffer_store_dwordx4 {vr(d0)}, v15, s[{SO}:{SO+3}], s3 offen")
    a(f"""
    s_waitcnt lgkmcnt(0)
    s_barrier
    v_mov_b32 v9, 0x20000
    ds_read_b128 v[4:7], v9
    s_waitcnt lgkmcnt(0)
    v_or_b32 v4, v4, v5
    v_or_b32 v6, v6, v7
    v_or_b32 v4, v4, v6
    s_nop 0
    v_readfirstlane_b32 s3, v4
    s_nop 3
    s_andn2_b32 s3, s3, s{sFB}
    s_cmp_eq_u32 s3, 0
    """)
    stamp(a, 4)
    if STAMP: a("s_cmp_eq_u32 s3, 0")
    a("s_cbranch_scc1 L1_end")
    a(f"s_mov_b32 s{sFB}, 1")
    for db in range(8): a(f"v_xor_b32 v{VA+db}, s{sC}, v{VA+db}")
    for qb in range(4): a(f"v_mov_b32 v{10+qb}, 0xff800000")
    a(f"s_mov_b32 s{sT}, 0"); a("s_mov_b32 s65, s64"); a("s_mov_b32 m0, s64")
    a("s_waitcnt vmcnt(0)"); a("s_barrier")
    a.label("L1_fb")
    for jj in range(4): a(dma(DK + jj, SK, 65, jj * 1024))
    a("s_waitcnt vmcnt(0)"); a("s_barrier")
    for st in range(2):
        for k in range(8): a(kread(st, k))
        a("s_waitcnt lgkmcnt(0)")
        qk_plain(a)
        a("s_nop 7")
        for qb in range(4):
            for r in range(0, 8, 2): a(f"v_max3_f32 v{10+qb}, v{10+qb}, v{S(0, qb)+r}, v{S(0, qb)+r+1}")
    a("s_barrier")
    a("s_add_u32 s65, s65, 0x4000"); a(f"s_add_u32 s{sT}, s{sT}, 1"); a(f"s_cmp_lt_u32 s{sT}, 16")
    a("s_cbranch_scc1 L1_fb")
    for qb in range(4):
        xlane(a, "v_max_f32", 10 + qb, 9)
        for r in range(4): a(f"v_sub_f32 v{CI(qb)+r}, 0, v{10+qb}")
    for r in range(144): a(f"v_accvgpr_write_b32 a{r}, 0")
    for i in k_tile_dma(0) + k_tile_dma(1) + v_tile_dma(0) + v_tile_dma(1) + k_tile_dma(2) + k_tile_dma(3) + v_tile_dma(2): a(i)
    a("s_waitcnt vmcnt(24)"); a("s_barrier")
    for k in range(8): a(kread(0, k))
    a("s_branch L1_attn")
    a.label("L1_end")
    a("s_endpgm")

def gen_k2(a):
    kernel_begin(a, K2)
    OA, DWO = 16, 20
    OF = lambda slot, qb: 64 + 16 * slot + 4 * qb
    WF = lambda f, nb: 192 + 16 * f + 4 * nb
    AC2 = lambda nb, qb: 16 * nb + 4 * qb
    a(f"""
    s_cmp_ge_u32 s2, 256
    s_cbranch_scc1 L2_end
    s_load_dwordx16 s[4:19], s[0:1], 0
    v_lshrrev_b32 v1, 6, v0
    v_and_b32 v2, 63, v0
    v_readfirstlane_b32 s{sW}, v1
    s_and_b32 s{sB}, s2, 7
    s_bfe_u32 s42, s2, 0x20003
    s_lshr_b32 s43, s2, 5
    v_lshrrev_b32 v3, 4, v2
    v_and_b32 v4, 15, v2
    v_bfe_u32 v5, v2, 2, 2
    v_and_b32 v6, 3, v2
    v_lshrrev_b32 v7, 3, v2
    v_and_b32 v8, 7, v2
    v_lshlrev_b32 v9, 1, v3
    v_xor_b32 v9, v9, v8
    v_lshlrev_b32 v9, 4, v9
    v_lshl_add_u32 v{DWO}, v7, 10, v9
    v_lshlrev_b32 v15, 4, v2
    s_lshl_b32 s63, s{sW}, 15
    s_waitcnt lgkmcnt(0)
    s_lshl_b32 s3, s{sB}, 2
    s_add_u32 s3, s3, s42
    s_lshl_b32 s3, s3, 2
    s_add_u32 s3, s3, s{sW}
    s_lshl_b32 s3, s3, 17
    s_add_u32 s66, s18, s3
    s_addc_u32 s67, s19, 0
    s_lshl_b32 s3, s{sW}, 20
    s_lshl_b32 s64, s43, 7
    s_add_u32 s3, s3, s64
    s_add_u32 s12, s12, s3
    s_addc_u32 s13, s13, 0
    s_mul_i32 s3, s{sB}, 245760
    s_add_u32 s14, s14, s3
    s_addc_u32 s15, s15, 0
    """)
    srd(a, 20, "s66", "s67", 131072); srd(a, 24, "s12", "s13", 1023 * 1024 + 128); srd(a, 28, "s14", "s15", 245760)
    for jj in range(4): a(f"s_mov_b32 s{44+jj}, {jj * 7168}")
    a("s_mov_b32 s48, 0")
    def issue(slot):
        o = [f"s_add_u32 m0, s63, {slot * 4096}"]
        o += [f"buffer_load_dwordx4 {vr(OF(slot, qb))}, v15, s[20:23], s48 offen offset:{qb * 1024}" for qb in range(4)]
        o += [dma(DWO, 24, 44 + jj, jj * 1024) for jj in range(4)]
        o += [f"s_add_u32 s{44+jj}, s{44+jj}, 0x8000" for jj in range(4)] + ["s_add_u32 s48, s48, 0x1000"]
        return o
    for n in range(7):
        for i in issue(n): a(i)
    a("v_lshl_add_u32 v11, v3, 2, v5")
    a("v_bfe_u32 v12, v11, 1, 2")
    a("v_lshlrev_b32 v11, 7, v11"); a("v_lshl_add_u32 v11, v6, 3, v11"); a("v_add_u32 v11, s63, v11")
    for nb in range(4):
        a(f"v_xor_b32 v9, {nb}, v12"); a(f"v_lshl_add_u32 v{OA+nb}, v9, 5, v11")
    for r in range(64): a(f"v_accvgpr_write_b32 a{r}, 0")
    def wreads(n):
        return [f"ds_read_b64_tr_b16 {vr(WF(n & 1, nb) + 2 * u, 2)}, v{OA+nb} offset:{(n % 8) * 4096 + u * 2048}"
                for nb in range(4) for u in range(2)]
    a("s_waitcnt vmcnt(48)")
    for i in wreads(0): a(i)
    a("s_mov_b32 s61, 0")
    a.raw(".p2align 6")
    a.label("L2_loop")
    for n in range(8):
        mf = [mfma(ar(AC2(nb, qb)), vr(WF(n & 1, nb)), vr(OF(n, qb)), ar(AC2(nb, qb))) for nb in range(4) for qb in range(4)]
        fill = {("pre", 0): ["s_waitcnt vmcnt(40) lgkmcnt(0)"]}
        spread(fill, wreads(n + 1), list(range(0, 8)))
        spread(fill, issue((n + 7) % 8), list(range(1, 16)))
        emit_gaps(a, mf, fill)
    a("s_add_u32 s61, s61, 1"); a("s_cmp_lt_u32 s61, 4"); a("s_cbranch_scc1 L2_loop")
    a("s_waitcnt vmcnt(0) lgkmcnt(0)"); a("s_barrier")
    a(f"s_lshl_b32 s3, s{sW}, 14")
    a("v_lshlrev_b32 v11, 8, v4"); a("v_add_u32 v11, s3, v11")
    for nb in range(4):
        a(f"v_add_u32 v9, {4*nb}, v3"); a("v_xor_b32 v9, v9, v4"); a(f"v_lshl_add_u32 v{OA+nb}, v9, 4, v11")
    for nb in range(4):
        for qb in range(4): a(f"ds_write_b128 v{OA+nb}, {ar(AC2(nb, qb))} offset:{qb * 4096}")
    a("v_lshrrev_b32 v10, 2, v2")
    a(f"s_lshl_b32 s3, s{sW}, 12")
    a("v_lshlrev_b32 v11, 8, v10"); a("v_add_u32 v11, s3, v11")
    for j in range(4):
        a(f"v_lshl_add_u32 v9, v6, 2, {j}"); a("v_xor_b32 v9, v9, v10"); a(f"v_lshl_add_u32 v{24+j}, v9, 4, v11")
    a("s_waitcnt lgkmcnt(0)"); a("s_barrier")
    for p in range(4):
        for j in range(4): a(f"ds_read_b128 {vr(64 + 16*p + 4*j)}, v{24+j} offset:{p * 16384}")
    a(f"s_lshl_b32 s3, s42, 2"); a(f"s_add_u32 s3, s3, s{sW}"); a("s_lshl_b32 s3, s3, 14"); a("s_add_u32 s3, s3, s64")
    a("v_lshlrev_b32 v11, 10, v10"); a("v_lshl_add_u32 v11, v6, 5, v11")
    a("s_waitcnt lgkmcnt(0)")
    for j in range(16): a(f"v_add_f32 v{64+j}, v{64+j}, v{80+j}")
    for j in range(16): a(f"v_add_f32 v{96+j}, v{96+j}, v{112+j}")
    for j in range(16): a(f"v_add_f32 v{64+j}, v{64+j}, v{96+j}")
    for j in range(8): a(f"v_cvt_pk_bf16_f32 v{128+j}, v{64+2*j}, v{65+2*j}")
    a("buffer_store_dwordx4 v[128:131], v11, s[28:31], s3 offen")
    a("buffer_store_dwordx4 v[132:135], v11, s[28:31], s3 offen offset:16")
    a.label("L2_end")
    a("s_endpgm")

def main(path):
    a = Asm()
    a.raw(f"; @launch kernel={K1} grid=(256,1,1) block=(256,1,1) lds=163840")
    a.raw(f"; @launch kernel={K2} grid=(256,1,1) block=(256,1,1) lds=131072")
    a.raw('.amdgcn_target "amdgcn-amd-amdhsa--gfx950"')
    n0 = len(a.lines); gen_k1(a); p1 = hazard.check(a.lines[n0:])
    n0 = len(a.lines); gen_k2(a); p2 = hazard.check(a.lines[n0:])
    kernel_desc(a, K1, 512, 256)
    kernel_desc(a, K2, 320, 256)
    for p in p1 + p2: print("HAZARD", p)
    open(path, "w").write(a.text())

if __name__ == "__main__":
    main(sys.argv[1])
```

```python
import sys, struct, math
from asm import *
import hazard

K1 = KNAME
K2 = "oproj_kernel"
STAMP = "--stamp" in sys.argv

def f2u(x): return struct.unpack("<I", struct.pack("<f", x))[0]
def vr(b, n=4): return f"v[{b}:{b+n-1}]"
def ar(b, n=4): return f"a[{b}:{b+n-1}]"
def mfma(d, a, b, c): return f"v_mfma_f32_16x16x32_bf16 {d}, {a}, {b}, {c}"

KA, VA, DK, DV, XA, WA, DX, DW = 16, 20, 28, 32, 34, 36, 44, 46
Q0, ACC = 48, 112
def Q(t, qb): return Q0 + 16 * qb + 4 * t
def AC(db, qb): return ACC + 16 * db + 4 * qb
def S(kb, qb): return 112 + 8 * qb + 4 * kb
def P(par, qb): return 144 + 16 * par + 4 * qb
def CI(qb): return 176 + 4 * qb
def O(db, qb): return 16 * db + 4 * qb
def L(qb): return 128 + 4 * qb
ONES = 144
def KF(kb, t): return 160 + 16 * kb + 4 * t
def VF(db): return 192 + 4 * db
def AF(f, db): return 160 + 32 * f + 4 * db
def BF(f, qb): return 224 + 16 * f + 4 * qb
SX, SW, SK, SV, SO = 20, 24, 28, 32, 36
sW, sB, sH = 40, 41, 42
sXO, sWO = 44, 52
sKo, sVo, mK, mV, sC, sT, sFB = 56, 57, 58, 59, 60, 61, 62
XBUF = [32768, 131072, 65536]
WBUF = [114688, 98304, 16384]
GRAY = [0, 1, 3, 2]

def srd(a, d, lo, hi, nrec):
    a(f"s_mov_b32 s{d}, {lo}"); a(f"s_mov_b32 s{d+1}, {hi}")
    a(f"s_mov_b32 s{d+2}, {nrec}"); a(f"s_mov_b32 s{d+3}, 0x20000")

POL = {}
for _a in sys.argv:
    if _a.startswith("--pol"):
        k, v = _a[6:].split("=")
        POL[int(k)] = " " + v.replace("+", " ")
def dma(voff, s, soff, off): return f"buffer_load_dwordx4 v{voff}, s[{s}:{s+3}], s{soff} offen offset:{off}{POL.get(s, '')} lds"

def stage_dma(s):
    o = []
    bx, bw = XBUF[s % 3], WBUF[s % 3]
    for jj in range(8):
        if jj % 4 == 0: o.append(f"s_add_u32 m0, s63, {bx + (jj // 4) * 4096}")
        o.append(dma(DX + (jj & 1), SX, sXO + jj, (jj & 3) * 1024))
    o.append(f"s_add_u32 m0, s64, {bw}")
    for jj in range(4): o.append(dma(DW + (jj >> 1), SW, sWO + jj, jj * 1024))
    o += [f"s_add_u32 s{SX}, s{SX}, 128", f"s_addc_u32 s{SX+1}, s{SX+1}, 0",
          f"s_add_u32 s{SW}, s{SW}, 0x80000", f"s_addc_u32 s{SW+1}, s{SW+1}, 0"]
    return o
def k_tile_dma(T):
    o = [f"s_add_u32 m0, s64, {GRAY[T % 4] * 16384}", f"s_add_u32 s65, s64, {T * 16384}"]
    return o + [dma(DK + jj, SK, 65, jj * 1024) for jj in range(4)]
def v_tile_dma(T):
    o = [f"s_add_u32 m0, s64, {65536 + GRAY[T % 4] * 16384}", f"s_add_u32 s66, s64, {T * 16384}"]
    return o + [dma(DV + (jj & 1), SV, 66, jj * 1024) for jj in range(4)]

def kread(step, n):
    kb, t = n >> 2, n & 3
    return f"ds_read_b128 {ar(KF(kb, t))}, v{KA + t} offset:{step * 8192 + kb * 4096}"
def vread(step, n):
    db, u = n >> 1, n & 1
    return f"ds_read_b64_tr_b16 {ar(VF(db) + 2 * u, 2)}, v{VA + db} offset:{step * 8192 + u * 4096}"

def emit_gaps(a, mf, fill):
    for g, m in enumerate(mf):
        for p in fill.get(("pre", g), []): a(p)
        a(m)
        for p in fill.get(g, []): a(p)

def spread(fill, items, gaps):
    assert len(items) <= len(gaps), (len(items), len(gaps))
    for it, g in zip(items, gaps): fill.setdefault(g, []).append(it)

def stamp(a, idx):
    if not STAMP: return
    a("s_memrealtime s[70:71]"); a("s_memtime s[72:73]"); a("s_waitcnt lgkmcnt(0)")
    a("v_mov_b32 v250, s70"); a("v_mov_b32 v251, s72"); a("v_mov_b32 v252, s74")
    a(f"buffer_store_dwordx2 v[250:251], v252, s[76:79], 0 offen offset:{idx * 8}")

def sm_pos(e): return 11 + 2 * e + (e >> 3)
def sm_exp(e): r = S((e >> 2) & 1, e >> 3) + (e & 3); return f"v_exp_f32 v{r}, v{r}"
def sm_cvt(e, par):
    r = S((e >> 2) & 1, e >> 3) + (e & 3)
    return f"v_cvt_pk_bf16_f32 v{P(par, e >> 3) + ((e >> 1) & 3)}, v{r-1}, v{r}"

def attn_iter(a, odd):
    par = odd
    mf = []
    for g in range(32):
        qb, kb, t = g >> 3, (g >> 2) & 1, g & 3
        mf.append(mfma(vr(S(kb, qb)), ar(KF(kb, t)), vr(Q(t, qb)), vr(CI(qb)) if t == 0 else vr(S(kb, qb))))
    for qb in range(4):
        for db in range(8): mf.append(mfma(ar(O(db, qb)), ar(VF(db)), vr(P(par, qb)), ar(O(db, qb))))
        mf.append(mfma(ar(L(qb)), ar(ONES), vr(P(par, qb)), ar(L(qb))))
    valu = {}
    slots = {g: 2 for g in range(68)}
    for e in range(32):
        p = sm_pos(e); pp = 1 - par
        if p >= 68: p -= 68; pp = par
        valu.setdefault(p, []).append(sm_exp(e)); slots[p] -= 2
        if e & 1:
            c = sm_pos(e) + 1; pp = 1 - par
            if c >= 68: c -= 68; pp = par
            valu.setdefault(c, []).append(sm_cvt(e, pp)); slots[c] -= 1
    def free(lo, hi, per=2):
        out = []
        for g in range(lo, hi): out += [g] * min(per, slots[g])
        return out
    def take(items, gaps):
        assert len(gaps) >= len(items), (items, gaps)
        for it, g in zip(items, gaps):
            slots[g] -= 1
            (mem if it.startswith(("ds_", "buffer_", "s_")) else valu).setdefault(g, []).append(it)
    mem = {}
    take([vread(odd, n) for n in range(16)], free(1, 31))
    take([kread(odd, n) for n in range(8)], free(33, 60, 1))
    if not odd:
        take([f"v_xor_b32 v{KA + t}, s{sC}, v{KA + t}" for t in range(4)], free(20, 31))
        d = [f"s_mov_b32 m0, s{mK}"] + [dma(DK + jj, SK, sKo, jj * 1024) for jj in range(4)] + \
            [f"s_add_u32 s{sKo}, s{sKo}, 0x4000", f"s_xor_b32 s{mK}, s{mK}, s{sC}", f"s_cmp_eq_u32 s{sT}, 15"]
        take(d, free(43, 67, 1))
    else:
        take([f"v_xor_b32 v{VA + db}, s{sC}, v{VA + db}" for db in range(8)], free(33, 67, 1))
        d = [f"s_mov_b32 m0, s{mV}"] + [dma(DV + (jj & 1), SV, sVo, jj * 1024) for jj in range(4)] + \
            [f"s_add_u32 s{sVo}, s{sVo}, 0x4000"]
        take(d, free(24, 67, 1))
    fill = {g: mem.get(g, []) + valu.get(g, []) for g in range(68)}
    fill[("pre", 32)] = ["s_waitcnt lgkmcnt(0)"]
    fill[("pre", 0)] = ["s_waitcnt lgkmcnt(0)"] if odd else ["s_waitcnt vmcnt(16) lgkmcnt(0)", "s_barrier"]
    if odd:
        fill[67] += [f"s_xor_b32 s{sC}, s{sC}, 0xc000", f"s_xor_b32 s{mV}, s{mV}, s{sC}", f"s_add_u32 s{sT}, s{sT}, 1"]
    emit_gaps(a, mf, fill)

def xlane(a, op, x, y):
    a(f"v_mov_b32 v{y}, v{x}"); a("s_nop 1"); a(f"v_permlane16_swap_b32 v{x}, v{y}"); a("s_nop 0")
    a(f"{op} v{x}, v{x}, v{y}")
    a(f"v_mov_b32 v{y}, v{x}"); a("s_nop 1"); a(f"v_permlane32_swap_b32 v{x}, v{y}"); a("s_nop 0")
    a(f"{op} v{x}, v{x}, v{y}")

def qk_plain(a):
    for g in range(32):
        qb, kb, t = g >> 3, (g >> 2) & 1, g & 3
        a(mfma(vr(S(kb, qb)), ar(KF(kb, t)), vr(Q(t, qb)), "0" if t == 0 else vr(S(kb, qb))))

def gen_k1(a):
    kernel_begin(a, K1)
    a(f"""
    s_cmp_ge_u32 s2, 256
    s_cbranch_scc1 L1_end
    s_load_dwordx16 s[4:19], s[0:1], 0
    v_lshrrev_b32 v1, 6, v0
    v_and_b32 v2, 63, v0
    v_readfirstlane_b32 s{sW}, v1
    s_and_b32 s3, s2, 1
    s_lshl_b32 s3, s3, 2
    s_bfe_u32 s{sB}, s2, 0x20003
    s_add_u32 s{sB}, s{sB}, s3
    s_bfe_u32 s3, s2, 0x20001
    s_lshl_b32 s3, s3, 3
    s_lshr_b32 s{sH}, s2, 5
    s_add_u32 s{sH}, s{sH}, s3
    s_lshl_b32 s63, s{sW}, 13
    s_lshl_b32 s64, s{sW}, 12
    """)
    a("""
    v_lshrrev_b32 v3, 4, v2
    v_and_b32 v4, 15, v2
    v_bfe_u32 v5, v2, 2, 2
    v_and_b32 v6, 3, v2
    v_lshrrev_b32 v7, 3, v2
    v_and_b32 v8, 7, v2
    """)
    for jj in range(4):
        a(f"v_add_u32 v9, {4*jj}, v3"); a("v_xor_b32 v9, v9, v4"); a("v_lshlrev_b32 v9, 4, v9")
        a(f"v_lshl_add_u32 v{DK+jj}, v3, 8, v9")
    for p in range(2):
        a(f"v_add_u32 v9, {4*p}, v3"); a("v_lshlrev_b32 v10, 1, v9"); a("v_xor_b32 v10, v10, v4"); a("v_lshlrev_b32 v10, 4, v10")
        a(f"v_lshl_add_u32 v{DV+p}, v3, 8, v10")
        a(f"v_lshl_add_u32 v{DW+p}, v3, 13, v10")
        a("v_xor_b32 v10, v9, v8"); a("v_lshlrev_b32 v10, 4, v10")
        a(f"v_lshl_add_u32 v{DX+p}, v7, 10, v10")
    a("s_waitcnt lgkmcnt(0)")
    a(f"""
    s_mul_i32 s3, s{sB}, 245760
    s_add_u32 s4, s4, s3
    s_addc_u32 s5, s5, 0
    s_lshl_b32 s3, s{sH}, 8
    s_add_u32 s10, s10, s3
    s_addc_u32 s11, s11, 0
    s_lshl_b32 s3, s{sB}, 5
    s_add_u32 s3, s3, s{sH}
    s_lshl_b32 s3, s3, 18
    s_add_u32 s6, s6, s3
    s_addc_u32 s7, s7, 0
    s_add_u32 s8, s8, s3
    s_addc_u32 s9, s9, 0
    """)
    srd(a, SX, "s4", "s5", 244864); srd(a, SW, "s10", "s11", 516352)
    srd(a, SK, "s6", "s7", 262144); srd(a, SV, "s8", "s9", 262144)
    a(f"s_lshl_b32 s3, s{sW}, 16")
    for jj in range(8): a(f"s_add_u32 s{sXO+jj}, s3, {(jj >> 2) * 32768 + (jj & 3) * 7168}")
    a(f"s_lshl_b32 s3, s{sW}, 17")
    for jj in range(4): a(f"s_add_u32 s{sWO+jj}, s3, {jj * 31744}")
    for i in stage_dma(0): a(i); (a("s_nop 0") if " m0," in i else None)
    for i in k_tile_dma(0): a(i)
    for s in (1, 2):
        for i in stage_dma(s): a(i); (a("s_nop 0") if " m0," in i else None)
    a(f"""
    s_lshl_b32 s3, s{sB}, 2
    s_add_u32 s3, s3, s{sW}
    s_lshl_b32 s3, s3, 5
    s_add_u32 s3, s3, s{sH}
    s_lshl_b32 s3, s3, 14
    s_add_u32 s66, s18, s3
    s_addc_u32 s67, s19, 0
    """)
    srd(a, SO, "s66", "s67", 16384)
    if STAMP:
        a("s_add_u32 s66, s18, 0x2000000"); a("s_addc_u32 s67, s19, 0")
        srd(a, 76, "s66", "s67", 0x100000)
        a(f"s_lshl_b32 s74, s2, 2"); a(f"s_add_u32 s74, s74, s{sW}"); a("s_lshl_b32 s74, s74, 8")
    for t in range(4):
        a(f"v_add_u32 v9, {4*t}, v3"); a("v_xor_b32 v9, v9, v4"); a("v_lshlrev_b32 v9, 4, v9")
        a(f"v_lshl_add_u32 v{KA+t}, v4, 8, v9")
    a("v_lshl_add_u32 v11, v3, 2, v5")
    a("v_and_b32 v12, 7, v11")
    a("v_lshlrev_b32 v13, 3, v6")
    a("v_lshl_add_u32 v11, v11, 8, v13")
    a("v_add_u32 v11, 0x10000, v11")
    for db in range(8):
        a(f"v_xor_b32 v9, {db}, v12"); a(f"v_lshl_add_u32 v{VA+db}, v9, 5, v11")
    a("v_lshl_add_u32 v11, v3, 3, v5")
    a("v_lshl_add_u32 v11, v11, 8, v13")
    a(f"v_add_u32 v11, {WBUF[0]}, v11")
    a("v_and_b32 v12, 1, v3"); a("v_lshl_add_u32 v12, v12, 2, v5")
    for db in range(8):
        a(f"v_xor_b32 v9, {db}, v12"); a(f"v_lshl_add_u32 v{WA+db}, v9, 5, v11")
    a("v_lshrrev_b32 v12, 1, v4")
    a(f"s_add_u32 s3, s63, {XBUF[0]}")
    a("v_lshlrev_b32 v11, 7, v4"); a("v_add_u32 v11, s3, v11")
    for t in range(2):
        a(f"v_add_u32 v9, {4*t}, v3"); a("v_xor_b32 v9, v9, v12"); a(f"v_lshl_add_u32 v{XA+t}, v9, 4, v11")
    a("v_lshlrev_b32 v15, 4, v2")
    a(f"s_mov_b32 s{sFB}, 0")
    stamp(a, 0)
    def qreads(n):
        f, t = n & 1, n & 1
        o = []
        for db in range(8):
            for v in range(2): o.append(f"ds_read_b64_tr_b16 {ar(AF(f, db) + 2 * v, 2)}, v{WA+db} offset:{t * 8192 + v * 1024}")
        xb = [f"ds_read_b128 {ar(BF(f, qb))}, v{XA+t} offset:{qb * 2048}" for qb in range(4)]
        return xb + o
    a("s_waitcnt vmcnt(28)" if not STAMP else "s_waitcnt vmcnt(29)")
    a("s_barrier")
    for i in qreads(0): a(i)
    zinit = [f"v_accvgpr_write_b32 a{r}, 0" for r in range(144)] + [f"v_accvgpr_write_b32 a{ONES+r}, v14" for r in range(4)]
    a("v_mov_b32 v14, 0x3f803f80")
    for n in range(16):
        f, s = n & 1, n >> 1
        mf = [mfma(vr(AC(db, qb)), ar(AF(f, db)), ar(BF(f, qb)), "0" if n == 0 else vr(AC(db, qb)))
              for db in range(8) for qb in range(4)]
        fill = {("pre", 0): ["s_waitcnt lgkmcnt(0)"]}
        if n & 1 == 0:
            spread(fill, qreads(n + 1), list(range(0, 20)))
            z, zinit = zinit[:19], zinit[19:]
            spread(fill, z, list(range(8, 32)))
        elif n < 15:
            fill[("pre", 0)] = ["s_waitcnt vmcnt(12) lgkmcnt(0)", "s_barrier"]
            dx = (XBUF[(s + 1) % 3] - XBUF[s % 3]) & 0xffffffff
            dw = (WBUF[(s + 1) % 3] - WBUF[s % 3]) & 0xffffffff
            upd = [f"v_add_u32 v{XA+t}, {dx:#x}, v{XA+t}" for t in range(2)] + [f"v_add_u32 v{WA+db}, {dw:#x}, v{WA+db}" for db in range(8)]
            spread(fill, upd, [0, 0, 1, 1, 2, 2, 3, 3, 4, 4])
            spread(fill, qreads(n + 1), list(range(5, 25)))
            if s + 3 <= 7: d = stage_dma(s + 3)
            elif s == 5: d = k_tile_dma(1) + v_tile_dma(0) + v_tile_dma(1)
            else: d = k_tile_dma(2) + k_tile_dma(3) + v_tile_dma(2)
            spread(fill, d, list(range(5, 32)))
        else:
            spread(fill, [kread(0, k) for k in range(8)], list(range(4, 12)))
        emit_gaps(a, mf, fill)
    assert not zinit
    stamp(a, 1)
    cs = f2u(math.log2(math.e) / math.sqrt(128.0))
    a(f"s_mov_b32 s66, {cs:#x}"); a(f"s_mov_b32 s67, {cs:#x}")
    a("s_nop 4")
    for qb in range(4):
        for db in range(8):
            for i in range(2): a(f"v_pk_mul_f32 {vr(AC(db, qb) + 2*i, 2)}, {vr(AC(db, qb) + 2*i, 2)}, s[66:67]")
        for db in range(8):
            for i in range(2): a(f"v_cvt_pk_bf16_f32 v{Q(db >> 1, qb) + 2*(db & 1) + i}, v{AC(db, qb) + 2*i}, v{AC(db, qb) + 2*i + 1}")
        for sw in ("32", "16"):
            for t in range(4):
                for i in range(2): a(f"v_permlane{sw}_swap_b32 v{Q(t, qb) + i}, v{Q(t, qb) + 2 + i}")
    a.label("L1_attn")
    a(f"""
    s_mov_b32 s{sC}, 0x4000
    s_mov_b32 s{sT}, 0
    s_add_u32 s{sKo}, s64, 0x10000
    s_add_u32 s{sVo}, s64, 0xc000
    s_mov_b32 s{mK}, s64
    s_add_u32 s{mV}, s64, {65536 + GRAY[3] * 16384}
    s_waitcnt lgkmcnt(0)
    """)
    qk_plain(a)
    for k in range(8): a(kread(1, k))
    a(f"s_cmp_lg_u32 s{sFB}, 0"); a("s_cbranch_scc1 L1_havemax")
    for qb in range(4):
        s0, s1 = S(0, qb), S(1, qb)
        a(f"v_max3_f32 v1, v{s0}, v{s0+1}, v{s0+2}"); a(f"v_max3_f32 v1, v1, v{s0+3}, v{s1}")
        a(f"v_max3_f32 v1, v1, v{s1+1}, v{s1+2}"); a(f"v_max_f32 v1, v1, v{s1+3}")
        xlane(a, "v_max_f32", 1, 9)
        for r in range(4): a(f"v_sub_f32 v{CI(qb)+r}, 0, v1")
    a.label("L1_havemax")
    for qb in range(4):
        for r in range(8): a(f"v_add_f32 v{S(0, qb)+r}, v{S(0, qb)+r}, v{CI(qb)}")
    pro = []
    for e in range(32):
        if sm_pos(e) < 68: pro.append((sm_pos(e), sm_exp(e)))
        if e & 1 and sm_pos(e) + 1 < 68: pro.append((sm_pos(e) + 100, sm_cvt(e, 0)))
    for _, i in sorted(pro): a(i)
    stamp(a, 2)
    a.raw(".p2align 6")
    a.label("L1_loop")
    attn_iter(a, 0)
    a("s_cbranch_scc1 L1_tail")
    attn_iter(a, 1)
    a("s_branch L1_loop")
    a.label("L1_tail")
    for n in range(16): a(vread(1, n))
    for e in range(32):
        if sm_pos(e) >= 68: a(sm_exp(e))
    for e in range(32):
        if e & 1 and sm_pos(e) + 1 >= 68: a(sm_cvt(e, 1))
    a("s_waitcnt lgkmcnt(0)")
    for qb in range(4):
        a(mfma(ar(L(qb)), ar(ONES), vr(P(1, qb)), ar(L(qb))))
        for db in range(8): a(mfma(ar(O(db, qb)), ar(VF(db)), vr(P(1, qb)), ar(O(db, qb))))
    stamp(a, 3)
    a("s_mov_b32 s3, 0x4f800000")
    for qb in range(4): a(f"v_accvgpr_read_b32 v{4+qb}, a{L(qb)}")
    for qb in range(4): a(f"v_cmp_nge_f32 s[{66+2*qb}:{67+2*qb}], s3, v{4+qb}")
    for qb in range(4): a(f"v_rcp_f32 v{4+qb}, v{4+qb}")
    a("s_or_b64 s[66:67], s[66:67], s[68:69]"); a("s_or_b64 s[70:71], s[70:71], s[72:73]")
    a("s_or_b64 s[66:67], s[66:67], s[70:71]")
    a("s_cselect_b32 s3, 1, 0")
    a(f"s_lshl_b32 s65, s{sW}, 2"); a("s_add_u32 s65, s65, 0x20000")
    a("v_mov_b32 v1, s3"); a("v_mov_b32 v9, s65"); a("ds_write_b32 v9, v1")
    k = 0
    for qb in range(4):
        for s in range(4):
            t0 = 192 + 8 * (k % 4); d0 = 224 + 4 * (k % 4); k += 1
            for j in range(8): a(f"v_accvgpr_read_b32 v{t0+j}, a{O(2*s + (j >> 2), qb) + (j & 3)}")
            for j in range(8): a(f"v_mul_f32 v{t0+j}, v{t0+j}, v{4+qb}")
            for j in range(4): a(f"v_cvt_pk_bf16_f32 v{d0+j}, v{t0+2*j}, v{t0+2*j+1}")
            a(f"s_mov_b32 s3, {(s * 4 + qb) * 1024}")
            a(f"buffer_store_dwordx4 {vr(d0)}, v15, s[{SO}:{SO+3}], s3 offen")
    a(f"""
    s_waitcnt lgkmcnt(0)
    s_barrier
    v_mov_b32 v9, 0x20000
    ds_read_b128 v[4:7], v9
    s_waitcnt lgkmcnt(0)
    v_or_b32 v4, v4, v5
    v_or_b32 v6, v6, v7
    v_or_b32 v4, v4, v6
    s_nop 0
    v_readfirstlane_b32 s3, v4
    s_nop 3
    s_andn2_b32 s3, s3, s{sFB}
    s_cmp_eq_u32 s3, 0
    """)
    stamp(a, 4)
    if STAMP: a("s_cmp_eq_u32 s3, 0")
    a("s_cbranch_scc1 L1_end")
    a(f"s_mov_b32 s{sFB}, 1")
    for db in range(8): a(f"v_xor_b32 v{VA+db}, s{sC}, v{VA+db}")
    for qb in range(4): a(f"v_mov_b32 v{10+qb}, 0xff800000")
    a(f"s_mov_b32 s{sT}, 0"); a("s_mov_b32 s65, s64"); a("s_mov_b32 m0, s64")
    a("s_waitcnt vmcnt(0)"); a("s_barrier")
    a.label("L1_fb")
    for jj in range(4): a(dma(DK + jj, SK, 65, jj * 1024))
    a("s_waitcnt vmcnt(0)"); a("s_barrier")
    for st in range(2):
        for k in range(8): a(kread(st, k))
        a("s_waitcnt lgkmcnt(0)")
        qk_plain(a)
        a("s_nop 7")
        for qb in range(4):
            for r in range(0, 8, 2): a(f"v_max3_f32 v{10+qb}, v{10+qb}, v{S(0, qb)+r}, v{S(0, qb)+r+1}")
    a("s_barrier")
    a("s_add_u32 s65, s65, 0x4000"); a(f"s_add_u32 s{sT}, s{sT}, 1"); a(f"s_cmp_lt_u32 s{sT}, 16")
    a("s_cbranch_scc1 L1_fb")
    for qb in range(4):
        xlane(a, "v_max_f32", 10 + qb, 9)
        for r in range(4): a(f"v_sub_f32 v{CI(qb)+r}, 0, v{10+qb}")
    for r in range(144): a(f"v_accvgpr_write_b32 a{r}, 0")
    for i in k_tile_dma(0) + k_tile_dma(1) + v_tile_dma(0) + v_tile_dma(1) + k_tile_dma(2) + k_tile_dma(3) + v_tile_dma(2): a(i)
    a("s_waitcnt vmcnt(24)"); a("s_barrier")
    for k in range(8): a(kread(0, k))
    a("s_branch L1_attn")
    a.label("L1_end")
    a("s_endpgm")

def gen_k2(a):
    kernel_begin(a, K2)
    OA, DWO = 16, 20
    OF = lambda slot, qb: 64 + 16 * slot + 4 * qb
    WF = lambda f, nb: 192 + 16 * f + 4 * nb
    AC2 = lambda nb, qb: 16 * nb + 4 * qb
    a(f"""
    s_cmp_ge_u32 s2, 256
    s_cbranch_scc1 L2_end
    s_load_dwordx16 s[4:19], s[0:1], 0
    v_lshrrev_b32 v1, 6, v0
    v_and_b32 v2, 63, v0
    v_readfirstlane_b32 s{sW}, v1
    s_and_b32 s{sB}, s2, 7
    s_bfe_u32 s42, s2, 0x20003
    s_lshr_b32 s43, s2, 5
    v_lshrrev_b32 v3, 4, v2
    v_and_b32 v4, 15, v2
    v_bfe_u32 v5, v2, 2, 2
    v_and_b32 v6, 3, v2
    v_lshrrev_b32 v7, 3, v2
    v_and_b32 v8, 7, v2
    v_lshlrev_b32 v9, 1, v3
    v_xor_b32 v9, v9, v8
    v_lshlrev_b32 v9, 4, v9
    v_lshl_add_u32 v{DWO}, v7, 10, v9
    v_lshlrev_b32 v15, 4, v2
    s_lshl_b32 s63, s{sW}, 15
    s_waitcnt lgkmcnt(0)
    s_lshl_b32 s3, s{sB}, 2
    s_add_u32 s3, s3, s42
    s_lshl_b32 s3, s3, 2
    s_add_u32 s3, s3, s{sW}
    s_lshl_b32 s3, s3, 17
    s_add_u32 s66, s18, s3
    s_addc_u32 s67, s19, 0
    s_lshl_b32 s3, s{sW}, 20
    s_lshl_b32 s64, s43, 7
    s_add_u32 s3, s3, s64
    s_add_u32 s12, s12, s3
    s_addc_u32 s13, s13, 0
    s_mul_i32 s3, s{sB}, 245760
    s_add_u32 s14, s14, s3
    s_addc_u32 s15, s15, 0
    """)
    srd(a, 20, "s66", "s67", 131072); srd(a, 24, "s12", "s13", 1023 * 1024 + 128); srd(a, 28, "s14", "s15", 245760)
    for jj in range(4): a(f"s_mov_b32 s{44+jj}, {jj * 7168}")
    a("s_mov_b32 s48, 0")
    def issue(slot):
        o = [f"s_add_u32 m0, s63, {slot * 4096}"]
        o += [f"buffer_load_dwordx4 {vr(OF(slot, qb))}, v15, s[20:23], s48 offen offset:{qb * 1024}" for qb in range(4)]
        o += [dma(DWO, 24, 44 + jj, jj * 1024) for jj in range(4)]
        o += [f"s_add_u32 s{44+jj}, s{44+jj}, 0x8000" for jj in range(4)] + ["s_add_u32 s48, s48, 0x1000"]
        return o
    for n in range(7):
        for i in issue(n): a(i)
    a("v_lshl_add_u32 v11, v3, 2, v5")
    a("v_bfe_u32 v12, v11, 1, 2")
    a("v_lshlrev_b32 v11, 7, v11"); a("v_lshl_add_u32 v11, v6, 3, v11"); a("v_add_u32 v11, s63, v11")
    for nb in range(4):
        a(f"v_xor_b32 v9, {nb}, v12"); a(f"v_lshl_add_u32 v{OA+nb}, v9, 5, v11")
    for r in range(64): a(f"v_accvgpr_write_b32 a{r}, 0")
    def wreads(n):
        return [f"ds_read_b64_tr_b16 {vr(WF(n & 1, nb) + 2 * u, 2)}, v{OA+nb} offset:{(n % 8) * 4096 + u * 2048}"
                for nb in range(4) for u in range(2)]
    a("s_waitcnt vmcnt(48)")
    for i in wreads(0): a(i)
    a("s_mov_b32 s61, 0")
    a.raw(".p2align 6")
    a.label("L2_loop")
    for n in range(8):
        mf = [mfma(ar(AC2(nb, qb)), vr(WF(n & 1, nb)), vr(OF(n, qb)), ar(AC2(nb, qb))) for nb in range(4) for qb in range(4)]
        fill = {("pre", 0): ["s_waitcnt vmcnt(40) lgkmcnt(0)"]}
        spread(fill, wreads(n + 1), list(range(0, 8)))
        spread(fill, issue((n + 7) % 8), list(range(1, 16)))
        emit_gaps(a, mf, fill)
    a("s_add_u32 s61, s61, 1"); a("s_cmp_lt_u32 s61, 4"); a("s_cbranch_scc1 L2_loop")
    a("s_waitcnt vmcnt(0) lgkmcnt(0)"); a("s_barrier")
    a(f"s_lshl_b32 s3, s{sW}, 14")
    a("v_lshlrev_b32 v11, 8, v4"); a("v_add_u32 v11, s3, v11")
    for nb in range(4):
        a(f"v_add_u32 v9, {4*nb}, v3"); a("v_xor_b32 v9, v9, v4"); a(f"v_lshl_add_u32 v{OA+nb}, v9, 4, v11")
    for nb in range(4):
        for qb in range(4): a(f"ds_write_b128 v{OA+nb}, {ar(AC2(nb, qb))} offset:{qb * 4096}")
    a("v_lshrrev_b32 v10, 2, v2")
    a(f"s_lshl_b32 s3, s{sW}, 12")
    a("v_lshlrev_b32 v11, 8, v10"); a("v_add_u32 v11, s3, v11")
    for j in range(4):
        a(f"v_lshl_add_u32 v9, v6, 2, {j}"); a("v_xor_b32 v9, v9, v10"); a(f"v_lshl_add_u32 v{24+j}, v9, 4, v11")
    a("s_waitcnt lgkmcnt(0)"); a("s_barrier")
    for p in range(4):
        for j in range(4): a(f"ds_read_b128 {vr(64 + 16*p + 4*j)}, v{24+j} offset:{p * 16384}")
    a(f"s_lshl_b32 s3, s42, 2"); a(f"s_add_u32 s3, s3, s{sW}"); a("s_lshl_b32 s3, s3, 14"); a("s_add_u32 s3, s3, s64")
    a("v_lshlrev_b32 v11, 10, v10"); a("v_lshl_add_u32 v11, v6, 5, v11")
    a("s_waitcnt lgkmcnt(0)")
    for j in range(16): a(f"v_add_f32 v{64+j}, v{64+j}, v{80+j}")
    for j in range(16): a(f"v_add_f32 v{96+j}, v{96+j}, v{112+j}")
    for j in range(16): a(f"v_add_f32 v{64+j}, v{64+j}, v{96+j}")
    for j in range(8): a(f"v_cvt_pk_bf16_f32 v{128+j}, v{64+2*j}, v{65+2*j}")
    a("buffer_store_dwordx4 v[128:131], v11, s[28:31], s3 offen")
    a("buffer_store_dwordx4 v[132:135], v11, s[28:31], s3 offen offset:16")
    a.label("L2_end")
    a("s_endpgm")

def main(path):
    a = Asm()
    a.raw(f"; @launch kernel={K1} grid=(256,1,1) block=(256,1,1) lds=163840")
    a.raw(f"; @launch kernel={K2} grid=(256,1,1) block=(256,1,1) lds=131072")
    a.raw('.amdgcn_target "amdgcn-amd-amdhsa--gfx950"')
    n0 = len(a.lines); gen_k1(a); p1 = hazard.check(a.lines[n0:])
    n0 = len(a.lines); gen_k2(a); p2 = hazard.check(a.lines[n0:])
    kernel_desc(a, K1, 512, 256)
    kernel_desc(a, K2, 320, 256)
    for p in p1 + p2: print("HAZARD", p)
    open(path, "w").write(a.text())

if __name__ == "__main__":
    main(sys.argv[1])
```

```python
import sys, struct, math
from asm import *
import hazard

K1 = KNAME
K2 = "oproj_kernel"
STAMP = "--stamp" in sys.argv

def f2u(x): return struct.unpack("<I", struct.pack("<f", x))[0]
def vr(b, n=4): return f"v[{b}:{b+n-1}]"
def ar(b, n=4): return f"a[{b}:{b+n-1}]"
def mfma(d, a, b, c): return f"v_mfma_f32_16x16x32_bf16 {d}, {a}, {b}, {c}"

KA, VA, DK, DV, XA, WA, DX, DW = 16, 20, 28, 32, 34, 36, 44, 46
Q0, ACC = 48, 112
def Q(t, qb): return Q0 + 16 * qb + 4 * t
def AC(db, qb): return ACC + 16 * db + 4 * qb
def S(kb, qb): return 112 + 8 * qb + 4 * kb
def P(par, qb): return 144 + 16 * par + 4 * qb
def CI(qb): return 176 + 4 * qb
def O(db, qb): return 16 * db + 4 * qb
def L(qb): return 128 + 4 * qb
ONES = 144
def KF(kb, t): return 160 + 16 * kb + 4 * t
def VF(db): return 192 + 4 * db
def AF(f, db): return 160 + 32 * f + 4 * db
def BF(f, qb): return 224 + 16 * f + 4 * qb
SX, SW, SK, SV, SO = 20, 24, 28, 32, 36
sW, sB, sH = 40, 41, 42
sXO, sWO = 44, 52
sKo, sVo, mK, mV, sC, sT, sFB = 56, 57, 58, 59, 60, 61, 62
XBUF = [32768, 131072, 65536]
WBUF = [114688, 98304, 16384]
GRAY = [0, 1, 3, 2]

def srd(a, d, lo, hi, nrec):
    a(f"s_mov_b32 s{d}, {lo}"); a(f"s_mov_b32 s{d+1}, {hi}")
    a(f"s_mov_b32 s{d+2}, {nrec}"); a(f"s_mov_b32 s{d+3}, 0x20000")

POL = {}
for _a in sys.argv:
    if _a.startswith("--pol"):
        k, v = _a[6:].split("=")
        POL[int(k)] = " " + v.replace("+", " ")
def dma(voff, s, soff, off): return f"buffer_load_dwordx4 v{voff}, s[{s}:{s+3}], s{soff} offen offset:{off}{POL.get(s, '')} lds"

def stage_dma(s):
    o = []
    bx, bw = XBUF[s % 3], WBUF[s % 3]
    for jj in range(8):
        if jj % 4 == 0: o.append(f"s_add_u32 m0, s63, {bx + (jj // 4) * 4096}")
        o.append(dma(DX + (jj & 1), SX, sXO + jj, (jj & 3) * 1024))
    o.append(f"s_add_u32 m0, s64, {bw}")
    for jj in range(4): o.append(dma(DW + (jj >> 1), SW, sWO + jj, jj * 1024))
    o += [f"s_add_u32 s{SX}, s{SX}, 128", f"s_addc_u32 s{SX+1}, s{SX+1}, 0",
          f"s_add_u32 s{SW}, s{SW}, 0x80000", f"s_addc_u32 s{SW+1}, s{SW+1}, 0"]
    return o
def k_tile_dma(T):
    o = [f"s_add_u32 m0, s64, {GRAY[T % 4] * 16384}", f"s_add_u32 s65, s64, {T * 16384}"]
    return o + [dma(DK + jj, SK, 65, jj * 1024) for jj in range(4)]
def v_tile_dma(T):
    o = [f"s_add_u32 m0, s64, {65536 + GRAY[T % 4] * 16384}", f"s_add_u32 s66, s64, {T * 16384}"]
    return o + [dma(DV + (jj & 1), SV, 66, jj * 1024) for jj in range(4)]

def kread(step, n):
    kb, t = n >> 2, n & 3
    return f"ds_read_b128 {ar(KF(kb, t))}, v{KA + t} offset:{step * 8192 + kb * 4096}"
def vread(step, n):
    db, u = n >> 1, n & 1
    return f"ds_read_b64_tr_b16 {ar(VF(db) + 2 * u, 2)}, v{VA + db} offset:{step * 8192 + u * 4096}"

def emit_gaps(a, mf, fill):
    for g, m in enumerate(mf):
        for p in fill.get(("pre", g), []): a(p)
        a(m)
        for p in fill.get(g, []): a(p)

def spread(fill, items, gaps):
    assert len(items) <= len(gaps), (len(items), len(gaps))
    for it, g in zip(items, gaps): fill.setdefault(g, []).append(it)

DBG = "--dbg" in sys.argv
def stamp(a, idx):
    if DBG:
        a("s_memrealtime s[70:71]"); a("s_waitcnt lgkmcnt(0)")
        a("v_mov_b32 v250, s70"); a("v_mov_b32 v252, 0"); a("v_not_b32 v251, v250")
        a("s_mov_b64 s[72:73], exec"); a("s_mov_b64 exec, 1")
        a(f"buffer_atomic_umax v250, v252, s[76:79], 0 offen offset:{idx * 4}")
        if idx in (0, 4, 5, 8): a(f"buffer_atomic_umax v251, v252, s[76:79], 0 offen offset:{ {0: 10, 4: 11, 5: 12, 8: 13}[idx] * 4}")
        a("s_mov_b64 exec, s[72:73]")
        return
    if not STAMP: return
    a("s_memrealtime s[70:71]"); a("s_memtime s[72:73]"); a("s_waitcnt lgkmcnt(0)")
    a("v_mov_b32 v250, s70"); a("v_mov_b32 v251, s72"); a("v_mov_b32 v252, s74")
    a(f"buffer_store_dwordx2 v[250:251], v252, s[76:79], 0 offen offset:{idx * 8}")

def sm_pos(e): return 11 + 2 * e + (e >> 3)
def sm_exp(e): r = S((e >> 2) & 1, e >> 3) + (e & 3); return f"v_exp_f32 v{r}, v{r}"
def sm_cvt(e, par):
    r = S((e >> 2) & 1, e >> 3) + (e & 3)
    return f"v_cvt_pk_bf16_f32 v{P(par, e >> 3) + ((e >> 1) & 3)}, v{r-1}, v{r}"

def attn_iter(a, odd):
    par = odd
    mf = []
    for g in range(32):
        qb, kb, t = g >> 3, (g >> 2) & 1, g & 3
        mf.append(mfma(vr(S(kb, qb)), ar(KF(kb, t)), vr(Q(t, qb)), vr(CI(qb)) if t == 0 else vr(S(kb, qb))))
    for qb in range(4):
        for db in range(8): mf.append(mfma(ar(O(db, qb)), ar(VF(db)), vr(P(par, qb)), ar(O(db, qb))))
        mf.append(mfma(ar(L(qb)), ar(ONES), vr(P(par, qb)), ar(L(qb))))
    valu = {}
    slots = {g: 2 for g in range(68)}
    for e in range(32):
        p = sm_pos(e); pp = 1 - par
        if p >= 68: p -= 68; pp = par
        valu.setdefault(p, []).append(sm_exp(e)); slots[p] -= 2
        if e & 1:
            c = sm_pos(e) + 1; pp = 1 - par
            if c >= 68: c -= 68; pp = par
            valu.setdefault(c, []).append(sm_cvt(e, pp)); slots[c] -= 1
    def free(lo, hi, per=2):
        out = []
        for g in range(lo, hi): out += [g] * min(per, slots[g])
        return out
    def take(items, gaps):
        assert len(gaps) >= len(items), (items, gaps)
        for it, g in zip(items, gaps):
            slots[g] -= 1
            (mem if it.startswith(("ds_", "buffer_", "s_")) else valu).setdefault(g, []).append(it)
    mem = {}
    take([vread(odd, n) for n in range(16)], free(1, 31))
    take([kread(odd, n) for n in range(8)], free(33, 60, 1))
    if not odd:
        take([f"v_xor_b32 v{KA + t}, s{sC}, v{KA + t}" for t in range(4)], free(20, 31))
        d = [f"s_mov_b32 m0, s{mK}"] + [dma(DK + jj, SK, sKo, jj * 1024) for jj in range(4)] + \
            [f"s_add_u32 s{sKo}, s{sKo}, 0x4000", f"s_xor_b32 s{mK}, s{mK}, s{sC}", f"s_cmp_eq_u32 s{sT}, 15"]
        take(d, free(43, 67, 1))
    else:
        take([f"v_xor_b32 v{VA + db}, s{sC}, v{VA + db}" for db in range(8)], free(33, 67, 1))
        d = [f"s_mov_b32 m0, s{mV}"] + [dma(DV + (jj & 1), SV, sVo, jj * 1024) for jj in range(4)] + \
            [f"s_add_u32 s{sVo}, s{sVo}, 0x4000"]
        take(d, free(24, 67, 1))
    fill = {g: mem.get(g, []) + valu.get(g, []) for g in range(68)}
    fill[("pre", 32)] = ["s_waitcnt lgkmcnt(0)"]
    fill[("pre", 0)] = ["s_waitcnt lgkmcnt(0)"] if odd else ["s_waitcnt vmcnt(16) lgkmcnt(0)", "s_barrier"]
    if odd:
        fill[67] += [f"s_xor_b32 s{sC}, s{sC}, 0xc000", f"s_xor_b32 s{mV}, s{mV}, s{sC}", f"s_add_u32 s{sT}, s{sT}, 1"]
    emit_gaps(a, mf, fill)

def xlane(a, op, x, y):
    a(f"v_mov_b32 v{y}, v{x}"); a("s_nop 1"); a(f"v_permlane16_swap_b32 v{x}, v{y}"); a("s_nop 0")
    a(f"{op} v{x}, v{x}, v{y}")
    a(f"v_mov_b32 v{y}, v{x}"); a("s_nop 1"); a(f"v_permlane32_swap_b32 v{x}, v{y}"); a("s_nop 0")
    a(f"{op} v{x}, v{x}, v{y}")

def qk_plain(a):
    for g in range(32):
        qb, kb, t = g >> 3, (g >> 2) & 1, g & 3
        a(mfma(vr(S(kb, qb)), ar(KF(kb, t)), vr(Q(t, qb)), "0" if t == 0 else vr(S(kb, qb))))

def gen_k1(a):
    kernel_begin(a, K1)
    a(f"""
    s_cmp_ge_u32 s2, 256
    s_cbranch_scc1 L1_end
    s_load_dwordx16 s[4:19], s[0:1], 0
    v_lshrrev_b32 v1, 6, v0
    v_and_b32 v2, 63, v0
    v_readfirstlane_b32 s{sW}, v1
    s_and_b32 s3, s2, 1
    s_lshl_b32 s3, s3, 2
    s_bfe_u32 s{sB}, s2, 0x20003
    s_add_u32 s{sB}, s{sB}, s3
    s_bfe_u32 s3, s2, 0x20001
    s_lshl_b32 s3, s3, 3
    s_lshr_b32 s{sH}, s2, 5
    s_add_u32 s{sH}, s{sH}, s3
    s_lshl_b32 s63, s{sW}, 13
    s_lshl_b32 s64, s{sW}, 12
    """)
    a("""
    v_lshrrev_b32 v3, 4, v2
    v_and_b32 v4, 15, v2
    v_bfe_u32 v5, v2, 2, 2
    v_and_b32 v6, 3, v2
    v_lshrrev_b32 v7, 3, v2
    v_and_b32 v8, 7, v2
    """)
    for jj in range(4):
        a(f"v_add_u32 v9, {4*jj}, v3"); a("v_xor_b32 v9, v9, v4"); a("v_lshlrev_b32 v9, 4, v9")
        a(f"v_lshl_add_u32 v{DK+jj}, v3, 8, v9")
    for p in range(2):
        a(f"v_add_u32 v9, {4*p}, v3"); a("v_lshlrev_b32 v10, 1, v9"); a("v_xor_b32 v10, v10, v4"); a("v_lshlrev_b32 v10, 4, v10")
        a(f"v_lshl_add_u32 v{DV+p}, v3, 8, v10")
        a(f"v_lshl_add_u32 v{DW+p}, v3, 13, v10")
        a("v_xor_b32 v10, v9, v8"); a("v_lshlrev_b32 v10, 4, v10")
        a(f"v_lshl_add_u32 v{DX+p}, v7, 10, v10")
    a("s_waitcnt lgkmcnt(0)")
    a(f"""
    s_mul_i32 s3, s{sB}, 245760
    s_add_u32 s4, s4, s3
    s_addc_u32 s5, s5, 0
    s_lshl_b32 s3, s{sH}, 8
    s_add_u32 s10, s10, s3
    s_addc_u32 s11, s11, 0
    s_lshl_b32 s3, s{sB}, 5
    s_add_u32 s3, s3, s{sH}
    s_lshl_b32 s3, s3, 18
    s_add_u32 s6, s6, s3
    s_addc_u32 s7, s7, 0
    s_add_u32 s8, s8, s3
    s_addc_u32 s9, s9, 0
    """)
    srd(a, SX, "s4", "s5", 244864); srd(a, SW, "s10", "s11", 516352)
    srd(a, SK, "s6", "s7", 262144); srd(a, SV, "s8", "s9", 262144)
    a(f"s_lshl_b32 s3, s{sW}, 16")
    for jj in range(8): a(f"s_add_u32 s{sXO+jj}, s3, {(jj >> 2) * 32768 + (jj & 3) * 7168}")
    a(f"s_lshl_b32 s3, s{sW}, 17")
    for jj in range(4): a(f"s_add_u32 s{sWO+jj}, s3, {jj * 31744}")
    for i in stage_dma(0): a(i); (a("s_nop 0") if " m0," in i else None)
    for i in k_tile_dma(0): a(i)
    for s in (1, 2):
        for i in stage_dma(s): a(i); (a("s_nop 0") if " m0," in i else None)
    a(f"""
    s_lshl_b32 s3, s{sB}, 2
    s_add_u32 s3, s3, s{sW}
    s_lshl_b32 s3, s3, 5
    s_add_u32 s3, s3, s{sH}
    s_lshl_b32 s3, s3, 14
    s_add_u32 s66, s18, s3
    s_addc_u32 s67, s19, 0
    """)
    srd(a, SO, "s66", "s67", 16384)
    if DBG: srd(a, 76, "s16", "s17", 256)
    if STAMP:
        a("s_add_u32 s66, s18, 0x2000000"); a("s_addc_u32 s67, s19, 0")
        srd(a, 76, "s66", "s67", 0x100000)
        a(f"s_lshl_b32 s74, s2, 2"); a(f"s_add_u32 s74, s74, s{sW}"); a("s_lshl_b32 s74, s74, 8")
    for t in range(4):
        a(f"v_add_u32 v9, {4*t}, v3"); a("v_xor_b32 v9, v9, v4"); a("v_lshlrev_b32 v9, 4, v9")
        a(f"v_lshl_add_u32 v{KA+t}, v4, 8, v9")
    a("v_lshl_add_u32 v11, v3, 2, v5")
    a("v_and_b32 v12, 7, v11")
    a("v_lshlrev_b32 v13, 3, v6")
    a("v_lshl_add_u32 v11, v11, 8, v13")
    a("v_add_u32 v11, 0x10000, v11")
    for db in range(8):
        a(f"v_xor_b32 v9, {db}, v12"); a(f"v_lshl_add_u32 v{VA+db}, v9, 5, v11")
    a("v_lshl_add_u32 v11, v3, 3, v5")
    a("v_lshl_add_u32 v11, v11, 8, v13")
    a(f"v_add_u32 v11, {WBUF[0]}, v11")
    a("v_and_b32 v12, 1, v3"); a("v_lshl_add_u32 v12, v12, 2, v5")
    for db in range(8):
        a(f"v_xor_b32 v9, {db}, v12"); a(f"v_lshl_add_u32 v{WA+db}, v9, 5, v11")
    a("v_lshrrev_b32 v12, 1, v4")
    a(f"s_add_u32 s3, s63, {XBUF[0]}")
    a("v_lshlrev_b32 v11, 7, v4"); a("v_add_u32 v11, s3, v11")
    for t in range(2):
        a(f"v_add_u32 v9, {4*t}, v3"); a("v_xor_b32 v9, v9, v12"); a(f"v_lshl_add_u32 v{XA+t}, v9, 4, v11")
    a("v_lshlrev_b32 v15, 4, v2")
    a(f"s_mov_b32 s{sFB}, 0")
    stamp(a, 0)
    def qreads(n):
        f, t = n & 1, n & 1
        o = []
        for db in range(8):
            for v in range(2): o.append(f"ds_read_b64_tr_b16 {ar(AF(f, db) + 2 * v, 2)}, v{WA+db} offset:{t * 8192 + v * 1024}")
        xb = [f"ds_read_b128 {ar(BF(f, qb))}, v{XA+t} offset:{qb * 2048}" for qb in range(4)]
        return xb + o
    a("s_waitcnt vmcnt(28)")
    a("s_barrier")
    for i in qreads(0): a(i)
    zinit = [f"v_accvgpr_write_b32 a{r}, 0" for r in range(144)] + [f"v_accvgpr_write_b32 a{ONES+r}, v14" for r in range(4)]
    a("v_mov_b32 v14, 0x3f803f80")
    for n in range(16):
        f, s = n & 1, n >> 1
        mf = [mfma(vr(AC(db, qb)), ar(AF(f, db)), ar(BF(f, qb)), "0" if n == 0 else vr(AC(db, qb)))
              for db in range(8) for qb in range(4)]
        fill = {("pre", 0): ["s_waitcnt lgkmcnt(0)"]}
        if n & 1 == 0:
            spread(fill, qreads(n + 1), list(range(0, 20)))
            z, zinit = zinit[:19], zinit[19:]
            spread(fill, z, list(range(8, 32)))
        elif n < 15:
            fill[("pre", 0)] = ["s_waitcnt vmcnt(12) lgkmcnt(0)", "s_barrier"]
            dx = (XBUF[(s + 1) % 3] - XBUF[s % 3]) & 0xffffffff
            dw = (WBUF[(s + 1) % 3] - WBUF[s % 3]) & 0xffffffff
            upd = [f"v_add_u32 v{XA+t}, {dx:#x}, v{XA+t}" for t in range(2)] + [f"v_add_u32 v{WA+db}, {dw:#x}, v{WA+db}" for db in range(8)]
            spread(fill, upd, [0, 0, 1, 1, 2, 2, 3, 3, 4, 4])
            spread(fill, qreads(n + 1), list(range(5, 25)))
            if s + 3 <= 7: d = stage_dma(s + 3)
            elif s == 5: d = k_tile_dma(1) + v_tile_dma(0) + v_tile_dma(1)
            else: d = k_tile_dma(2) + k_tile_dma(3) + v_tile_dma(2)
            spread(fill, d, list(range(5, 32)))
        else:
            spread(fill, [kread(0, k) for k in range(8)], list(range(4, 12)))
        emit_gaps(a, mf, fill)
    assert not zinit
    stamp(a, 1)
    cs = f2u(math.log2(math.e) / math.sqrt(128.0))
    a(f"s_mov_b32 s66, {cs:#x}"); a(f"s_mov_b32 s67, {cs:#x}")
    a("s_nop 4")
    for qb in range(4):
        for db in range(8):
            for i in range(2): a(f"v_pk_mul_f32 {vr(AC(db, qb) + 2*i, 2)}, {vr(AC(db, qb) + 2*i, 2)}, s[66:67]")
        for db in range(8):
            for i in range(2): a(f"v_cvt_pk_bf16_f32 v{Q(db >> 1, qb) + 2*(db & 1) + i}, v{AC(db, qb) + 2*i}, v{AC(db, qb) + 2*i + 1}")
        for sw in ("32", "16"):
            for t in range(4):
                for i in range(2): a(f"v_permlane{sw}_swap_b32 v{Q(t, qb) + i}, v{Q(t, qb) + 2 + i}")
    a.label("L1_attn")
    a(f"""
    s_mov_b32 s{sC}, 0x4000
    s_mov_b32 s{sT}, 0
    s_add_u32 s{sKo}, s64, 0x10000
    s_add_u32 s{sVo}, s64, 0xc000
    s_mov_b32 s{mK}, s64
    s_add_u32 s{mV}, s64, {65536 + GRAY[3] * 16384}
    s_waitcnt lgkmcnt(0)
    """)
    qk_plain(a)
    for k in range(8): a(kread(1, k))
    a(f"s_cmp_lg_u32 s{sFB}, 0"); a("s_cbranch_scc1 L1_havemax")
    for qb in range(4):
        s0, s1 = S(0, qb), S(1, qb)
        a(f"v_max3_f32 v1, v{s0}, v{s0+1}, v{s0+2}"); a(f"v_max3_f32 v1, v1, v{s0+3}, v{s1}")
        a(f"v_max3_f32 v1, v1, v{s1+1}, v{s1+2}"); a(f"v_max_f32 v1, v1, v{s1+3}")
        xlane(a, "v_max_f32", 1, 9)
        for r in range(4): a(f"v_sub_f32 v{CI(qb)+r}, 0, v1")
    a.label("L1_havemax")
    for qb in range(4):
        for r in range(8): a(f"v_add_f32 v{S(0, qb)+r}, v{S(0, qb)+r}, v{CI(qb)}")
    pro = []
    for e in range(32):
        if sm_pos(e) < 68: pro.append((sm_pos(e), sm_exp(e)))
        if e & 1 and sm_pos(e) + 1 < 68: pro.append((sm_pos(e) + 100, sm_cvt(e, 0)))
    for _, i in sorted(pro): a(i)
    stamp(a, 2)
    a.raw(".p2align 6")
    a.label("L1_loop")
    attn_iter(a, 0)
    a("s_cbranch_scc1 L1_tail")
    attn_iter(a, 1)
    a("s_branch L1_loop")
    a.label("L1_tail")
    for n in range(16): a(vread(1, n))
    for e in range(32):
        if sm_pos(e) >= 68: a(sm_exp(e))
    for e in range(32):
        if e & 1 and sm_pos(e) + 1 >= 68: a(sm_cvt(e, 1))
    a("s_waitcnt lgkmcnt(0)")
    for qb in range(4):
        a(mfma(ar(L(qb)), ar(ONES), vr(P(1, qb)), ar(L(qb))))
        for db in range(8): a(mfma(ar(O(db, qb)), ar(VF(db)), vr(P(1, qb)), ar(O(db, qb))))
    stamp(a, 3)
    a("s_mov_b32 s3, 0x4f800000")
    for qb in range(4): a(f"v_accvgpr_read_b32 v{4+qb}, a{L(qb)}")
    for qb in range(4): a(f"v_cmp_nge_f32 s[{66+2*qb}:{67+2*qb}], s3, v{4+qb}")
    for qb in range(4): a(f"v_rcp_f32 v{4+qb}, v{4+qb}")
    a("s_or_b64 s[66:67], s[66:67], s[68:69]"); a("s_or_b64 s[70:71], s[70:71], s[72:73]")
    a("s_or_b64 s[66:67], s[66:67], s[70:71]")
    a("s_cselect_b32 s3, 1, 0")
    a(f"s_lshl_b32 s65, s{sW}, 2"); a("s_add_u32 s65, s65, 0x20000")
    a("v_mov_b32 v1, s3"); a("v_mov_b32 v9, s65"); a("ds_write_b32 v9, v1")
    k = 0
    for qb in range(4):
        for s in range(4):
            t0 = 192 + 8 * (k % 4); d0 = 224 + 4 * (k % 4); k += 1
            for j in range(8): a(f"v_accvgpr_read_b32 v{t0+j}, a{O(2*s + (j >> 2), qb) + (j & 3)}")
            for j in range(8): a(f"v_mul_f32 v{t0+j}, v{t0+j}, v{4+qb}")
            for j in range(4): a(f"v_cvt_pk_bf16_f32 v{d0+j}, v{t0+2*j}, v{t0+2*j+1}")
            a(f"s_mov_b32 s3, {(s * 4 + qb) * 1024}")
            a(f"buffer_store_dwordx4 {vr(d0)}, v15, s[{SO}:{SO+3}], s3 offen")
    a(f"""
    s_waitcnt lgkmcnt(0)
    s_barrier
    v_mov_b32 v9, 0x20000
    ds_read_b128 v[4:7], v9
    s_waitcnt lgkmcnt(0)
    v_or_b32 v4, v4, v5
    v_or_b32 v6, v6, v7
    v_or_b32 v4, v4, v6
    s_nop 0
    v_readfirstlane_b32 s3, v4
    s_nop 3
    s_andn2_b32 s3, s3, s{sFB}
    s_cmp_eq_u32 s3, 0
    """)
    stamp(a, 4)
    if STAMP or DBG: a("s_cmp_eq_u32 s3, 0")
    a("s_cbranch_scc1 L1_end")
    a(f"s_mov_b32 s{sFB}, 1")
    for db in range(8): a(f"v_xor_b32 v{VA+db}, s{sC}, v{VA+db}")
    for qb in range(4): a(f"v_mov_b32 v{10+qb}, 0xff800000")
    a(f"s_mov_b32 s{sT}, 0"); a("s_mov_b32 s65, s64"); a("s_mov_b32 m0, s64")
    a("s_waitcnt vmcnt(0)"); a("s_barrier")
    a.label("L1_fb")
    for jj in range(4): a(dma(DK + jj, SK, 65, jj * 1024))
    a("s_waitcnt vmcnt(0)"); a("s_barrier")
    for st in range(2):
        for k in range(8): a(kread(st, k))
        a("s_waitcnt lgkmcnt(0)")
        qk_plain(a)
        a("s_nop 7")
        for qb in range(4):
            for r in range(0, 8, 2): a(f"v_max3_f32 v{10+qb}, v{10+qb}, v{S(0, qb)+r}, v{S(0, qb)+r+1}")
    a("s_barrier")
    a("s_add_u32 s65, s65, 0x4000"); a(f"s_add_u32 s{sT}, s{sT}, 1"); a(f"s_cmp_lt_u32 s{sT}, 16")
    a("s_cbranch_scc1 L1_fb")
    for qb in range(4):
        xlane(a, "v_max_f32", 10 + qb, 9)
        for r in range(4): a(f"v_sub_f32 v{CI(qb)+r}, 0, v{10+qb}")
    for r in range(144): a(f"v_accvgpr_write_b32 a{r}, 0")
    for i in k_tile_dma(0) + k_tile_dma(1) + v_tile_dma(0) + v_tile_dma(1) + k_tile_dma(2) + k_tile_dma(3) + v_tile_dma(2): a(i)
    a("s_waitcnt vmcnt(24)"); a("s_barrier")
    for k in range(8): a(kread(0, k))
    a("s_branch L1_attn")
    a.label("L1_end")
    a("s_endpgm")

def gen_k2(a):
    kernel_begin(a, K2)
    OA, DWO = 16, 20
    OF = lambda slot, qb: 64 + 16 * slot + 4 * qb
    WF = lambda f, nb: 192 + 16 * f + 4 * nb
    AC2 = lambda nb, qb: 16 * nb + 4 * qb
    a(f"""
    s_cmp_ge_u32 s2, 256
    s_cbranch_scc1 L2_end
    s_load_dwordx16 s[4:19], s[0:1], 0
    v_lshrrev_b32 v1, 6, v0
    v_and_b32 v2, 63, v0
    v_readfirstlane_b32 s{sW}, v1
    s_and_b32 s{sB}, s2, 7
    s_bfe_u32 s42, s2, 0x20003
    s_lshr_b32 s43, s2, 5
    v_lshrrev_b32 v3, 4, v2
    v_and_b32 v4, 15, v2
    v_bfe_u32 v5, v2, 2, 2
    v_and_b32 v6, 3, v2
    v_lshrrev_b32 v7, 3, v2
    v_and_b32 v8, 7, v2
    v_lshlrev_b32 v9, 1, v3
    v_xor_b32 v9, v9, v8
    v_lshlrev_b32 v9, 4, v9
    v_lshl_add_u32 v{DWO}, v7, 10, v9
    v_lshlrev_b32 v15, 4, v2
    s_lshl_b32 s63, s{sW}, 15
    s_waitcnt lgkmcnt(0)
    s_lshl_b32 s3, s{sB}, 2
    s_add_u32 s3, s3, s42
    s_lshl_b32 s3, s3, 2
    s_add_u32 s3, s3, s{sW}
    s_lshl_b32 s3, s3, 17
    s_add_u32 s66, s18, s3
    s_addc_u32 s67, s19, 0
    s_lshl_b32 s3, s{sW}, 20
    s_lshl_b32 s64, s43, 7
    s_add_u32 s3, s3, s64
    s_add_u32 s12, s12, s3
    s_addc_u32 s13, s13, 0
    s_mul_i32 s3, s{sB}, 245760
    s_add_u32 s14, s14, s3
    s_addc_u32 s15, s15, 0
    """)
    srd(a, 20, "s66", "s67", 131072); srd(a, 24, "s12", "s13", 1023 * 1024 + 128); srd(a, 28, "s14", "s15", 245760)
    if STAMP:
        a("s_add_u32 s66, s18, 0x2000000"); a("s_addc_u32 s67, s19, 0")
        srd(a, 76, "s66", "s67", 0x100000)
        a(f"s_lshl_b32 s74, s2, 2"); a(f"s_add_u32 s74, s74, s{sW}"); a("s_lshl_b32 s74, s74, 8")
    if DBG:
        a("s_sub_u32 s16, s16, 512"); a("s_subb_u32 s17, s17, 0")
        srd(a, 76, "s16", "s17", 256)
    stamp(a, 5)
    for jj in range(4): a(f"s_mov_b32 s{44+jj}, {jj * 7168}")
    a("s_mov_b32 s48, 0")
    def issue(slot):
        o = [f"s_add_u32 m0, s63, {slot * 4096}"]
        o += [f"buffer_load_dwordx4 {vr(OF(slot, qb))}, v15, s[20:23], s48 offen offset:{qb * 1024}" for qb in range(4)]
        o += [dma(DWO, 24, 44 + jj, jj * 1024) for jj in range(4)]
        o += [f"s_add_u32 s{44+jj}, s{44+jj}, 0x8000" for jj in range(4)] + ["s_add_u32 s48, s48, 0x1000"]
        return o
    for n in range(7):
        for i in issue(n): a(i)
    a("v_lshl_add_u32 v11, v3, 2, v5")
    a("v_bfe_u32 v12, v11, 1, 2")
    a("v_lshlrev_b32 v11, 7, v11"); a("v_lshl_add_u32 v11, v6, 3, v11"); a("v_add_u32 v11, s63, v11")
    for nb in range(4):
        a(f"v_xor_b32 v9, {nb}, v12"); a(f"v_lshl_add_u32 v{OA+nb}, v9, 5, v11")
    for r in range(64): a(f"v_accvgpr_write_b32 a{r}, 0")
    def wreads(n):
        return [f"ds_read_b64_tr_b16 {vr(WF(n & 1, nb) + 2 * u, 2)}, v{OA+nb} offset:{(n % 8) * 4096 + u * 2048}"
                for nb in range(4) for u in range(2)]
    a("s_waitcnt vmcnt(48)")
    stamp(a, 6)
    for i in wreads(0): a(i)
    a("s_mov_b32 s61, 0")
    a.raw(".p2align 6")
    a.label("L2_loop")
    for n in range(8):
        mf = [mfma(ar(AC2(nb, qb)), vr(WF(n & 1, nb)), vr(OF(n, qb)), ar(AC2(nb, qb))) for nb in range(4) for qb in range(4)]
        fill = {("pre", 0): ["s_waitcnt vmcnt(40) lgkmcnt(0)"]}
        spread(fill, wreads(n + 1), list(range(0, 8)))
        spread(fill, issue((n + 7) % 8), list(range(1, 16)))
        emit_gaps(a, mf, fill)
    a("s_add_u32 s61, s61, 1"); a("s_cmp_lt_u32 s61, 4"); a("s_cbranch_scc1 L2_loop")
    stamp(a, 7)
    a("s_waitcnt vmcnt(0) lgkmcnt(0)"); a("s_barrier")
    a(f"s_lshl_b32 s3, s{sW}, 14")
    a("v_lshlrev_b32 v11, 8, v4"); a("v_add_u32 v11, s3, v11")
    for nb in range(4):
        a(f"v_add_u32 v9, {4*nb}, v3"); a("v_xor_b32 v9, v9, v4"); a(f"v_lshl_add_u32 v{OA+nb}, v9, 4, v11")
    for nb in range(4):
        for qb in range(4): a(f"ds_write_b128 v{OA+nb}, {ar(AC2(nb, qb))} offset:{qb * 4096}")
    a("v_lshrrev_b32 v10, 2, v2")
    a(f"s_lshl_b32 s3, s{sW}, 12")
    a("v_lshlrev_b32 v11, 8, v10"); a("v_add_u32 v11, s3, v11")
    for j in range(4):
        a(f"v_lshl_add_u32 v9, v6, 2, {j}"); a("v_xor_b32 v9, v9, v10"); a(f"v_lshl_add_u32 v{24+j}, v9, 4, v11")
    a("s_waitcnt lgkmcnt(0)"); a("s_barrier")
    for p in range(4):
        for j in range(4): a(f"ds_read_b128 {vr(64 + 16*p + 4*j)}, v{24+j} offset:{p * 16384}")
    a(f"s_lshl_b32 s3, s42, 2"); a(f"s_add_u32 s3, s3, s{sW}"); a("s_lshl_b32 s3, s3, 14"); a("s_add_u32 s3, s3, s64")
    a("v_lshlrev_b32 v11, 10, v10"); a("v_lshl_add_u32 v11, v6, 5, v11")
    a("s_waitcnt lgkmcnt(0)")
    for j in range(16): a(f"v_add_f32 v{64+j}, v{64+j}, v{80+j}")
    for j in range(16): a(f"v_add_f32 v{96+j}, v{96+j}, v{112+j}")
    for j in range(16): a(f"v_add_f32 v{64+j}, v{64+j}, v{96+j}")
    for j in range(8): a(f"v_cvt_pk_bf16_f32 v{128+j}, v{64+2*j}, v{65+2*j}")
    a("buffer_store_dwordx4 v[128:131], v11, s[28:31], s3 offen")
    a("buffer_store_dwordx4 v[132:135], v11, s[28:31], s3 offen offset:16")
    a("s_waitcnt vmcnt(0)")
    stamp(a, 8)
    a.label("L2_end")
    a("s_endpgm")

def main(path):
    a = Asm()
    a.raw(f"; @launch kernel={K1} grid=(256,1,1) block=(256,1,1) lds=163840")
    a.raw(f"; @launch kernel={K2} grid=(256,1,1) block=(256,1,1) lds=131072")
    a.raw('.amdgcn_target "amdgcn-amd-amdhsa--gfx950"')
    n0 = len(a.lines); gen_k1(a); p1 = hazard.check(a.lines[n0:])
    n0 = len(a.lines); gen_k2(a); p2 = hazard.check(a.lines[n0:])
    kernel_desc(a, K1, 512, 256)
    kernel_desc(a, K2, 320, 256)
    for p in p1 + p2: print("HAZARD", p)
    open(path, "w").write(a.text())

if __name__ == "__main__":
    main(sys.argv[1])
```

```python
import sys, struct, math
from asm import *
import hazard

K1 = KNAME
K2 = "oproj_kernel"
STAMP = "--stamp" in sys.argv

def f2u(x): return struct.unpack("<I", struct.pack("<f", x))[0]
def vr(b, n=4): return f"v[{b}:{b+n-1}]"
def ar(b, n=4): return f"a[{b}:{b+n-1}]"
def mfma(d, a, b, c): return f"v_mfma_f32_16x16x32_bf16 {d}, {a}, {b}, {c}"

KA, VA, DK, DV, XA, WA, DX, DW = 16, 20, 28, 32, 34, 36, 44, 46
Q0, ACC = 48, 112
def Q(t, qb): return Q0 + 16 * qb + 4 * t
def AC(db, qb): return ACC + 16 * db + 4 * qb
def S(kb, qb): return 112 + 8 * qb + 4 * kb
def P(par, qb): return 144 + 16 * par + 4 * qb
def CI(qb): return 176 + 4 * qb
def O(db, qb): return 16 * db + 4 * qb
def L(qb): return 128 + 4 * qb
ONES = 144
def KF(kb, t): return 160 + 16 * kb + 4 * t
def VF(db): return 192 + 4 * db
def AF(f, db): return 160 + 32 * f + 4 * db
def BF(f, qb): return 224 + 16 * f + 4 * qb
SX, SW, SK, SV, SO = 20, 24, 28, 32, 36
sW, sB, sH = 40, 41, 42
sXO, sWO = 44, 52
sKo, sVo, mK, mV, sC, sT, sFB = 56, 57, 58, 59, 60, 61, 62
XBUF = [32768, 131072, 65536]
WBUF = [114688, 98304, 16384]
GRAY = [0, 1, 3, 2]

def srd(a, d, lo, hi, nrec):
    a(f"s_mov_b32 s{d}, {lo}"); a(f"s_mov_b32 s{d+1}, {hi}")
    a(f"s_mov_b32 s{d+2}, {nrec}"); a(f"s_mov_b32 s{d+3}, 0x20000")

POL = {}
for _a in sys.argv:
    if _a.startswith("--pol"):
        k, v = _a[6:].split("=")
        POL[int(k)] = " " + v.replace("+", " ")
def dma(voff, s, soff, off): return f"buffer_load_dwordx4 v{voff}, s[{s}:{s+3}], s{soff} offen offset:{off}{POL.get(s, '')} lds"

def stage_dma(s):
    o = []
    bx, bw = XBUF[s % 3], WBUF[s % 3]
    for jj in range(8):
        if jj % 4 == 0: o.append(f"s_add_u32 m0, s63, {bx + (jj // 4) * 4096}")
        o.append(dma(DX + (jj & 1), SX, sXO + jj, (jj & 3) * 1024))
    o.append(f"s_add_u32 m0, s64, {bw}")
    for jj in range(4): o.append(dma(DW + (jj >> 1), SW, sWO + jj, jj * 1024))
    o += [f"s_add_u32 s{SX}, s{SX}, 128", f"s_addc_u32 s{SX+1}, s{SX+1}, 0",
          f"s_add_u32 s{SW}, s{SW}, 0x80000", f"s_addc_u32 s{SW+1}, s{SW+1}, 0"]
    return o
def k_tile_dma(T):
    o = [f"s_add_u32 m0, s64, {GRAY[T % 4] * 16384}", f"s_add_u32 s65, s64, {T * 16384}"]
    return o + [dma(DK + jj, SK, 65, jj * 1024) for jj in range(4)]
def v_tile_dma(T):
    o = [f"s_add_u32 m0, s64, {65536 + GRAY[T % 4] * 16384}", f"s_add_u32 s66, s64, {T * 16384}"]
    return o + [dma(DV + (jj & 1), SV, 66, jj * 1024) for jj in range(4)]

def kread(step, n):
    kb, t = n >> 2, n & 3
    return f"ds_read_b128 {ar(KF(kb, t))}, v{KA + t} offset:{step * 8192 + kb * 4096}"
def vread(step, n):
    db, u = n >> 1, n & 1
    return f"ds_read_b64_tr_b16 {ar(VF(db) + 2 * u, 2)}, v{VA + db} offset:{step * 8192 + u * 4096}"

def emit_gaps(a, mf, fill):
    for g, m in enumerate(mf):
        for p in fill.get(("pre", g), []): a(p)
        a(m)
        for p in fill.get(g, []): a(p)

def spread(fill, items, gaps):
    assert len(items) <= len(gaps), (len(items), len(gaps))
    for it, g in zip(items, gaps): fill.setdefault(g, []).append(it)

DBG = "--dbg" in sys.argv
def stamp(a, idx):
    if DBG:
        a("s_memrealtime s[70:71]"); a("s_waitcnt lgkmcnt(0)")
        a("v_mov_b32 v250, s70"); a("v_mov_b32 v252, s74"); a("v_mov_b32 v251, s75")
        a(f"buffer_store_dword v250, v252, s[76:79], 0 offen offset:{idx * 4}")
        m = {0: 9, 1: 10, 3: 11, 4: 12, 5: 13, 7: 14, 8: 15}
        if idx in m: a(f"buffer_store_dword v250, v251, s[76:79], 0 offen offset:{m[idx] * 4}")
        return
    if not STAMP: return
    a("s_memrealtime s[70:71]"); a("s_memtime s[72:73]"); a("s_waitcnt lgkmcnt(0)")
    a("v_mov_b32 v250, s70"); a("v_mov_b32 v251, s72"); a("v_mov_b32 v252, s74")
    a(f"buffer_store_dwordx2 v[250:251], v252, s[76:79], 0 offen offset:{idx * 8}")

def sm_pos(e): return 11 + 2 * e + (e >> 3)
def sm_exp(e): r = S((e >> 2) & 1, e >> 3) + (e & 3); return f"v_exp_f32 v{r}, v{r}"
def sm_cvt(e, par):
    r = S((e >> 2) & 1, e >> 3) + (e & 3)
    return f"v_cvt_pk_bf16_f32 v{P(par, e >> 3) + ((e >> 1) & 3)}, v{r-1}, v{r}"

def attn_iter(a, odd):
    par = odd
    mf = []
    for g in range(32):
        qb, kb, t = g >> 3, (g >> 2) & 1, g & 3
        mf.append(mfma(vr(S(kb, qb)), ar(KF(kb, t)), vr(Q(t, qb)), vr(CI(qb)) if t == 0 else vr(S(kb, qb))))
    for qb in range(4):
        for db in range(8): mf.append(mfma(ar(O(db, qb)), ar(VF(db)), vr(P(par, qb)), ar(O(db, qb))))
        mf.append(mfma(ar(L(qb)), ar(ONES), vr(P(par, qb)), ar(L(qb))))
    valu = {}
    slots = {g: 2 for g in range(68)}
    for e in range(32):
        p = sm_pos(e); pp = 1 - par
        if p >= 68: p -= 68; pp = par
        valu.setdefault(p, []).append(sm_exp(e)); slots[p] -= 2
        if e & 1:
            c = sm_pos(e) + 1; pp = 1 - par
            if c >= 68: c -= 68; pp = par
            valu.setdefault(c, []).append(sm_cvt(e, pp)); slots[c] -= 1
    def free(lo, hi, per=2):
        out = []
        for g in range(lo, hi): out += [g] * min(per, slots[g])
        return out
    def take(items, gaps):
        assert len(gaps) >= len(items), (items, gaps)
        for it, g in zip(items, gaps):
            slots[g] -= 1
            (mem if it.startswith(("ds_", "buffer_", "s_")) else valu).setdefault(g, []).append(it)
    mem = {}
    take([vread(odd, n) for n in range(16)], free(1, 31))
    take([kread(odd, n) for n in range(8)], free(33, 60, 1))
    if not odd:
        take([f"v_xor_b32 v{KA + t}, s{sC}, v{KA + t}" for t in range(4)], free(20, 31))
        d = [f"s_mov_b32 m0, s{mK}"] + [dma(DK + jj, SK, sKo, jj * 1024) for jj in range(4)] + \
            [f"s_add_u32 s{sKo}, s{sKo}, 0x4000", f"s_xor_b32 s{mK}, s{mK}, s{sC}", f"s_cmp_eq_u32 s{sT}, 15"]
        take(d, free(43, 67, 1))
    else:
        take([f"v_xor_b32 v{VA + db}, s{sC}, v{VA + db}" for db in range(8)], free(33, 67, 1))
        d = [f"s_mov_b32 m0, s{mV}"] + [dma(DV + (jj & 1), SV, sVo, jj * 1024) for jj in range(4)] + \
            [f"s_add_u32 s{sVo}, s{sVo}, 0x4000"]
        take(d, free(24, 67, 1))
    fill = {g: mem.get(g, []) + valu.get(g, []) for g in range(68)}
    fill[("pre", 32)] = ["s_waitcnt lgkmcnt(0)"]
    fill[("pre", 0)] = ["s_waitcnt lgkmcnt(0)"] if odd else ["s_waitcnt vmcnt(16) lgkmcnt(0)", "s_barrier"]
    if odd:
        fill[67] += [f"s_xor_b32 s{sC}, s{sC}, 0xc000", f"s_xor_b32 s{mV}, s{mV}, s{sC}", f"s_add_u32 s{sT}, s{sT}, 1"]
    emit_gaps(a, mf, fill)

def xlane(a, op, x, y):
    a(f"v_mov_b32 v{y}, v{x}"); a("s_nop 1"); a(f"v_permlane16_swap_b32 v{x}, v{y}"); a("s_nop 0")
    a(f"{op} v{x}, v{x}, v{y}")
    a(f"v_mov_b32 v{y}, v{x}"); a("s_nop 1"); a(f"v_permlane32_swap_b32 v{x}, v{y}"); a("s_nop 0")
    a(f"{op} v{x}, v{x}, v{y}")

def qk_plain(a):
    for g in range(32):
        qb, kb, t = g >> 3, (g >> 2) & 1, g & 3
        a(mfma(vr(S(kb, qb)), ar(KF(kb, t)), vr(Q(t, qb)), "0" if t == 0 else vr(S(kb, qb))))

def gen_k1(a):
    kernel_begin(a, K1)
    a(f"""
    s_cmp_ge_u32 s2, 256
    s_cbranch_scc1 L1_end
    s_load_dwordx16 s[4:19], s[0:1], 0
    v_lshrrev_b32 v1, 6, v0
    v_and_b32 v2, 63, v0
    v_readfirstlane_b32 s{sW}, v1
    s_and_b32 s3, s2, 1
    s_lshl_b32 s3, s3, 2
    s_bfe_u32 s{sB}, s2, 0x20003
    s_add_u32 s{sB}, s{sB}, s3
    s_bfe_u32 s3, s2, 0x20001
    s_lshl_b32 s3, s3, 3
    s_lshr_b32 s{sH}, s2, 5
    s_add_u32 s{sH}, s{sH}, s3
    s_lshl_b32 s63, s{sW}, 13
    s_lshl_b32 s64, s{sW}, 12
    """)
    a("""
    v_lshrrev_b32 v3, 4, v2
    v_and_b32 v4, 15, v2
    v_bfe_u32 v5, v2, 2, 2
    v_and_b32 v6, 3, v2
    v_lshrrev_b32 v7, 3, v2
    v_and_b32 v8, 7, v2
    """)
    for jj in range(4):
        a(f"v_add_u32 v9, {4*jj}, v3"); a("v_xor_b32 v9, v9, v4"); a("v_lshlrev_b32 v9, 4, v9")
        a(f"v_lshl_add_u32 v{DK+jj}, v3, 8, v9")
    for p in range(2):
        a(f"v_add_u32 v9, {4*p}, v3"); a("v_lshlrev_b32 v10, 1, v9"); a("v_xor_b32 v10, v10, v4"); a("v_lshlrev_b32 v10, 4, v10")
        a(f"v_lshl_add_u32 v{DV+p}, v3, 8, v10")
        a(f"v_lshl_add_u32 v{DW+p}, v3, 13, v10")
        a("v_xor_b32 v10, v9, v8"); a("v_lshlrev_b32 v10, 4, v10")
        a(f"v_lshl_add_u32 v{DX+p}, v7, 10, v10")
    a("s_waitcnt lgkmcnt(0)")
    a(f"""
    s_mul_i32 s3, s{sB}, 245760
    s_add_u32 s4, s4, s3
    s_addc_u32 s5, s5, 0
    s_lshl_b32 s3, s{sH}, 8
    s_add_u32 s10, s10, s3
    s_addc_u32 s11, s11, 0
    s_lshl_b32 s3, s{sB}, 5
    s_add_u32 s3, s3, s{sH}
    s_lshl_b32 s3, s3, 18
    s_add_u32 s6, s6, s3
    s_addc_u32 s7, s7, 0
    s_add_u32 s8, s8, s3
    s_addc_u32 s9, s9, 0
    """)
    srd(a, SX, "s4", "s5", 244864); srd(a, SW, "s10", "s11", 516352)
    srd(a, SK, "s6", "s7", 262144); srd(a, SV, "s8", "s9", 262144)
    a(f"s_lshl_b32 s3, s{sW}, 16")
    for jj in range(8): a(f"s_add_u32 s{sXO+jj}, s3, {(jj >> 2) * 32768 + (jj & 3) * 7168}")
    a(f"s_lshl_b32 s3, s{sW}, 17")
    for jj in range(4): a(f"s_add_u32 s{sWO+jj}, s3, {jj * 31744}")
    for i in stage_dma(0): a(i); (a("s_nop 0") if " m0," in i else None)
    for i in k_tile_dma(0): a(i)
    for s in (1, 2):
        for i in stage_dma(s): a(i); (a("s_nop 0") if " m0," in i else None)
    a(f"""
    s_lshl_b32 s3, s{sB}, 2
    s_add_u32 s3, s3, s{sW}
    s_lshl_b32 s3, s3, 5
    s_add_u32 s3, s3, s{sH}
    s_lshl_b32 s3, s3, 14
    s_add_u32 s66, s18, s3
    s_addc_u32 s67, s19, 0
    """)
    srd(a, SO, "s66", "s67", 16384)
    if DBG:
        a("s_add_u32 s16, s16, 512"); a("s_addc_u32 s17, s17, 0")
        srd(a, 76, "s16", "s17", 256)
        a(f"s_lshl_b32 s3, s2, 2"); a(f"s_add_u32 s3, s3, s{sW}")
        a("s_cmp_eq_u32 s3, 0"); a("s_cselect_b32 s74, 0, 0x1000"); a("s_cmp_eq_u32 s3, 532"); a("s_cselect_b32 s75, 0, 0x1000")
    if STAMP:
        a("s_add_u32 s66, s18, 0x2000000"); a("s_addc_u32 s67, s19, 0")
        srd(a, 76, "s66", "s67", 0x100000)
        a(f"s_lshl_b32 s74, s2, 2"); a(f"s_add_u32 s74, s74, s{sW}"); a("s_lshl_b32 s74, s74, 8")
    for t in range(4):
        a(f"v_add_u32 v9, {4*t}, v3"); a("v_xor_b32 v9, v9, v4"); a("v_lshlrev_b32 v9, 4, v9")
        a(f"v_lshl_add_u32 v{KA+t}, v4, 8, v9")
    a("v_lshl_add_u32 v11, v3, 2, v5")
    a("v_and_b32 v12, 7, v11")
    a("v_lshlrev_b32 v13, 3, v6")
    a("v_lshl_add_u32 v11, v11, 8, v13")
    a("v_add_u32 v11, 0x10000, v11")
    for db in range(8):
        a(f"v_xor_b32 v9, {db}, v12"); a(f"v_lshl_add_u32 v{VA+db}, v9, 5, v11")
    a("v_lshl_add_u32 v11, v3, 3, v5")
    a("v_lshl_add_u32 v11, v11, 8, v13")
    a(f"v_add_u32 v11, {WBUF[0]}, v11")
    a("v_and_b32 v12, 1, v3"); a("v_lshl_add_u32 v12, v12, 2, v5")
    for db in range(8):
        a(f"v_xor_b32 v9, {db}, v12"); a(f"v_lshl_add_u32 v{WA+db}, v9, 5, v11")
    a("v_lshrrev_b32 v12, 1, v4")
    a(f"s_add_u32 s3, s63, {XBUF[0]}")
    a("v_lshlrev_b32 v11, 7, v4"); a("v_add_u32 v11, s3, v11")
    for t in range(2):
        a(f"v_add_u32 v9, {4*t}, v3"); a("v_xor_b32 v9, v9, v12"); a(f"v_lshl_add_u32 v{XA+t}, v9, 4, v11")
    a("v_lshlrev_b32 v15, 4, v2")
    a(f"s_mov_b32 s{sFB}, 0")
    stamp(a, 0)
    def qreads(n):
        f, t = n & 1, n & 1
        o = []
        for db in range(8):
            for v in range(2): o.append(f"ds_read_b64_tr_b16 {ar(AF(f, db) + 2 * v, 2)}, v{WA+db} offset:{t * 8192 + v * 1024}")
        xb = [f"ds_read_b128 {ar(BF(f, qb))}, v{XA+t} offset:{qb * 2048}" for qb in range(4)]
        return xb + o
    a("s_waitcnt vmcnt(28)")
    a("s_barrier")
    for i in qreads(0): a(i)
    zinit = [f"v_accvgpr_write_b32 a{r}, 0" for r in range(144)] + [f"v_accvgpr_write_b32 a{ONES+r}, v14" for r in range(4)]
    a("v_mov_b32 v14, 0x3f803f80")
    for n in range(16):
        f, s = n & 1, n >> 1
        mf = [mfma(vr(AC(db, qb)), ar(AF(f, db)), ar(BF(f, qb)), "0" if n == 0 else vr(AC(db, qb)))
              for db in range(8) for qb in range(4)]
        fill = {("pre", 0): ["s_waitcnt lgkmcnt(0)"]}
        if n & 1 == 0:
            spread(fill, qreads(n + 1), list(range(0, 20)))
            z, zinit = zinit[:19], zinit[19:]
            spread(fill, z, list(range(8, 32)))
        elif n < 15:
            fill[("pre", 0)] = ["s_waitcnt vmcnt(12) lgkmcnt(0)", "s_barrier"]
            dx = (XBUF[(s + 1) % 3] - XBUF[s % 3]) & 0xffffffff
            dw = (WBUF[(s + 1) % 3] - WBUF[s % 3]) & 0xffffffff
            upd = [f"v_add_u32 v{XA+t}, {dx:#x}, v{XA+t}" for t in range(2)] + [f"v_add_u32 v{WA+db}, {dw:#x}, v{WA+db}" for db in range(8)]
            spread(fill, upd, [0, 0, 1, 1, 2, 2, 3, 3, 4, 4])
            spread(fill, qreads(n + 1), list(range(5, 25)))
            if s + 3 <= 7: d = stage_dma(s + 3)
            elif s == 5: d = k_tile_dma(1) + v_tile_dma(0) + v_tile_dma(1)
            else: d = k_tile_dma(2) + k_tile_dma(3) + v_tile_dma(2)
            spread(fill, d, list(range(5, 32)))
        else:
            spread(fill, [kread(0, k) for k in range(8)], list(range(4, 12)))
        emit_gaps(a, mf, fill)
    assert not zinit
    stamp(a, 1)
    cs = f2u(math.log2(math.e) / math.sqrt(128.0))
    a(f"s_mov_b32 s66, {cs:#x}"); a(f"s_mov_b32 s67, {cs:#x}")
    a("s_nop 4")
    for qb in range(4):
        for db in range(8):
            for i in range(2): a(f"v_pk_mul_f32 {vr(AC(db, qb) + 2*i, 2)}, {vr(AC(db, qb) + 2*i, 2)}, s[66:67]")
        for db in range(8):
            for i in range(2): a(f"v_cvt_pk_bf16_f32 v{Q(db >> 1, qb) + 2*(db & 1) + i}, v{AC(db, qb) + 2*i}, v{AC(db, qb) + 2*i + 1}")
        for sw in ("32", "16"):
            for t in range(4):
                for i in range(2): a(f"v_permlane{sw}_swap_b32 v{Q(t, qb) + i}, v{Q(t, qb) + 2 + i}")
    a.label("L1_attn")
    a(f"""
    s_mov_b32 s{sC}, 0x4000
    s_mov_b32 s{sT}, 0
    s_add_u32 s{sKo}, s64, 0x10000
    s_add_u32 s{sVo}, s64, 0xc000
    s_mov_b32 s{mK}, s64
    s_add_u32 s{mV}, s64, {65536 + GRAY[3] * 16384}
    s_waitcnt lgkmcnt(0)
    """)
    qk_plain(a)
    for k in range(8): a(kread(1, k))
    a(f"s_cmp_lg_u32 s{sFB}, 0"); a("s_cbranch_scc1 L1_havemax")
    for qb in range(4):
        s0, s1 = S(0, qb), S(1, qb)
        a(f"v_max3_f32 v1, v{s0}, v{s0+1}, v{s0+2}"); a(f"v_max3_f32 v1, v1, v{s0+3}, v{s1}")
        a(f"v_max3_f32 v1, v1, v{s1+1}, v{s1+2}"); a(f"v_max_f32 v1, v1, v{s1+3}")
        xlane(a, "v_max_f32", 1, 9)
        for r in range(4): a(f"v_sub_f32 v{CI(qb)+r}, 0, v1")
    a.label("L1_havemax")
    for qb in range(4):
        for r in range(8): a(f"v_add_f32 v{S(0, qb)+r}, v{S(0, qb)+r}, v{CI(qb)}")
    pro = []
    for e in range(32):
        if sm_pos(e) < 68: pro.append((sm_pos(e), sm_exp(e)))
        if e & 1 and sm_pos(e) + 1 < 68: pro.append((sm_pos(e) + 100, sm_cvt(e, 0)))
    for _, i in sorted(pro): a(i)
    stamp(a, 2)
    a.raw(".p2align 6")
    a.label("L1_loop")
    attn_iter(a, 0)
    a("s_cbranch_scc1 L1_tail")
    attn_iter(a, 1)
    a("s_branch L1_loop")
    a.label("L1_tail")
    for n in range(16): a(vread(1, n))
    for e in range(32):
        if sm_pos(e) >= 68: a(sm_exp(e))
    for e in range(32):
        if e & 1 and sm_pos(e) + 1 >= 68: a(sm_cvt(e, 1))
    a("s_waitcnt lgkmcnt(0)")
    for qb in range(4):
        a(mfma(ar(L(qb)), ar(ONES), vr(P(1, qb)), ar(L(qb))))
        for db in range(8): a(mfma(ar(O(db, qb)), ar(VF(db)), vr(P(1, qb)), ar(O(db, qb))))
    stamp(a, 3)
    a("s_mov_b32 s3, 0x4f800000")
    for qb in range(4): a(f"v_accvgpr_read_b32 v{4+qb}, a{L(qb)}")
    for qb in range(4): a(f"v_cmp_nge_f32 s[{66+2*qb}:{67+2*qb}], s3, v{4+qb}")
    for qb in range(4): a(f"v_rcp_f32 v{4+qb}, v{4+qb}")
    a("s_or_b64 s[66:67], s[66:67], s[68:69]"); a("s_or_b64 s[70:71], s[70:71], s[72:73]")
    a("s_or_b64 s[66:67], s[66:67], s[70:71]")
    a("s_cselect_b32 s3, 1, 0")
    a(f"s_lshl_b32 s65, s{sW}, 2"); a("s_add_u32 s65, s65, 0x20000")
    a("v_mov_b32 v1, s3"); a("v_mov_b32 v9, s65"); a("ds_write_b32 v9, v1")
    k = 0
    for qb in range(4):
        for s in range(4):
            t0 = 192 + 8 * (k % 4); d0 = 224 + 4 * (k % 4); k += 1
            for j in range(8): a(f"v_accvgpr_read_b32 v{t0+j}, a{O(2*s + (j >> 2), qb) + (j & 3)}")
            for j in range(8): a(f"v_mul_f32 v{t0+j}, v{t0+j}, v{4+qb}")
            for j in range(4): a(f"v_cvt_pk_bf16_f32 v{d0+j}, v{t0+2*j}, v{t0+2*j+1}")
            a(f"s_mov_b32 s3, {(s * 4 + qb) * 1024}")
            a(f"buffer_store_dwordx4 {vr(d0)}, v15, s[{SO}:{SO+3}], s3 offen")
    a(f"""
    s_waitcnt lgkmcnt(0)
    s_barrier
    v_mov_b32 v9, 0x20000
    ds_read_b128 v[4:7], v9
    s_waitcnt lgkmcnt(0)
    v_or_b32 v4, v4, v5
    v_or_b32 v6, v6, v7
    v_or_b32 v4, v4, v6
    s_nop 0
    v_readfirstlane_b32 s3, v4
    s_nop 3
    s_andn2_b32 s3, s3, s{sFB}
    s_cmp_eq_u32 s3, 0
    """)
    stamp(a, 4)
    if STAMP or DBG: a("s_cmp_eq_u32 s3, 0")
    a("s_cbranch_scc1 L1_end")
    a(f"s_mov_b32 s{sFB}, 1")
    for db in range(8): a(f"v_xor_b32 v{VA+db}, s{sC}, v{VA+db}")
    for qb in range(4): a(f"v_mov_b32 v{10+qb}, 0xff800000")
    a(f"s_mov_b32 s{sT}, 0"); a("s_mov_b32 s65, s64"); a("s_mov_b32 m0, s64")
    a("s_waitcnt vmcnt(0)"); a("s_barrier")
    a.label("L1_fb")
    for jj in range(4): a(dma(DK + jj, SK, 65, jj * 1024))
    a("s_waitcnt vmcnt(0)"); a("s_barrier")
    for st in range(2):
        for k in range(8): a(kread(st, k))
        a("s_waitcnt lgkmcnt(0)")
        qk_plain(a)
        a("s_nop 7")
        for qb in range(4):
            for r in range(0, 8, 2): a(f"v_max3_f32 v{10+qb}, v{10+qb}, v{S(0, qb)+r}, v{S(0, qb)+r+1}")
    a("s_barrier")
    a("s_add_u32 s65, s65, 0x4000"); a(f"s_add_u32 s{sT}, s{sT}, 1"); a(f"s_cmp_lt_u32 s{sT}, 16")
    a("s_cbranch_scc1 L1_fb")
    for qb in range(4):
        xlane(a, "v_max_f32", 10 + qb, 9)
        for r in range(4): a(f"v_sub_f32 v{CI(qb)+r}, 0, v{10+qb}")
    for r in range(144): a(f"v_accvgpr_write_b32 a{r}, 0")
    for i in k_tile_dma(0) + k_tile_dma(1) + v_tile_dma(0) + v_tile_dma(1) + k_tile_dma(2) + k_tile_dma(3) + v_tile_dma(2): a(i)
    a("s_waitcnt vmcnt(24)"); a("s_barrier")
    for k in range(8): a(kread(0, k))
    a("s_branch L1_attn")
    a.label("L1_end")
    a("s_endpgm")

def gen_k2(a):
    kernel_begin(a, K2)
    OA, DWO = 16, 20
    OF = lambda slot, qb: 64 + 16 * slot + 4 * qb
    WF = lambda f, nb: 192 + 16 * f + 4 * nb
    AC2 = lambda nb, qb: 16 * nb + 4 * qb
    a(f"""
    s_cmp_ge_u32 s2, 256
    s_cbranch_scc1 L2_end
    s_load_dwordx16 s[4:19], s[0:1], 0
    v_lshrrev_b32 v1, 6, v0
    v_and_b32 v2, 63, v0
    v_readfirstlane_b32 s{sW}, v1
    s_and_b32 s{sB}, s2, 7
    s_bfe_u32 s42, s2, 0x20003
    s_lshr_b32 s43, s2, 5
    v_lshrrev_b32 v3, 4, v2
    v_and_b32 v4, 15, v2
    v_bfe_u32 v5, v2, 2, 2
    v_and_b32 v6, 3, v2
    v_lshrrev_b32 v7, 3, v2
    v_and_b32 v8, 7, v2
    v_lshlrev_b32 v9, 1, v3
    v_xor_b32 v9, v9, v8
    v_lshlrev_b32 v9, 4, v9
    v_lshl_add_u32 v{DWO}, v7, 10, v9
    v_lshlrev_b32 v15, 4, v2
    s_lshl_b32 s63, s{sW}, 15
    s_waitcnt lgkmcnt(0)
    s_lshl_b32 s3, s{sB}, 2
    s_add_u32 s3, s3, s42
    s_lshl_b32 s3, s3, 2
    s_add_u32 s3, s3, s{sW}
    s_lshl_b32 s3, s3, 17
    s_add_u32 s66, s18, s3
    s_addc_u32 s67, s19, 0
    s_lshl_b32 s3, s{sW}, 20
    s_lshl_b32 s64, s43, 7
    s_add_u32 s3, s3, s64
    s_add_u32 s12, s12, s3
    s_addc_u32 s13, s13, 0
    s_mul_i32 s3, s{sB}, 245760
    s_add_u32 s14, s14, s3
    s_addc_u32 s15, s15, 0
    """)
    srd(a, 20, "s66", "s67", 131072); srd(a, 24, "s12", "s13", 1023 * 1024 + 128); srd(a, 28, "s14", "s15", 245760)
    if STAMP:
        a("s_add_u32 s66, s18, 0x2000000"); a("s_addc_u32 s67, s19, 0")
        srd(a, 76, "s66", "s67", 0x100000)
        a(f"s_lshl_b32 s74, s2, 2"); a(f"s_add_u32 s74, s74, s{sW}"); a("s_lshl_b32 s74, s74, 8")
    if DBG:
        srd(a, 76, "s16", "s17", 256)
        a(f"s_lshl_b32 s3, s2, 2"); a(f"s_add_u32 s3, s3, s{sW}")
        a("s_cmp_eq_u32 s3, 0"); a("s_cselect_b32 s74, 0, 0x1000"); a("s_cmp_eq_u32 s3, 532"); a("s_cselect_b32 s75, 0, 0x1000")

    stamp(a, 5)
    for jj in range(4): a(f"s_mov_b32 s{44+jj}, {jj * 7168}")
    a("s_mov_b32 s48, 0")
    def issue(slot):
        o = [f"s_add_u32 m0, s63, {slot * 4096}"]
        o += [f"buffer_load_dwordx4 {vr(OF(slot, qb))}, v15, s[20:23], s48 offen offset:{qb * 1024}" for qb in range(4)]
        o += [dma(DWO, 24, 44 + jj, jj * 1024) for jj in range(4)]
        o += [f"s_add_u32 s{44+jj}, s{44+jj}, 0x8000" for jj in range(4)] + ["s_add_u32 s48, s48, 0x1000"]
        return o
    for n in range(7):
        for i in issue(n): a(i)
    a("v_lshl_add_u32 v11, v3, 2, v5")
    a("v_bfe_u32 v12, v11, 1, 2")
    a("v_lshlrev_b32 v11, 7, v11"); a("v_lshl_add_u32 v11, v6, 3, v11"); a("v_add_u32 v11, s63, v11")
    for nb in range(4):
        a(f"v_xor_b32 v9, {nb}, v12"); a(f"v_lshl_add_u32 v{OA+nb}, v9, 5, v11")
    for r in range(64): a(f"v_accvgpr_write_b32 a{r}, 0")
    def wreads(n):
        return [f"ds_read_b64_tr_b16 {vr(WF(n & 1, nb) + 2 * u, 2)}, v{OA+nb} offset:{(n % 8) * 4096 + u * 2048}"
                for nb in range(4) for u in range(2)]
    a("s_waitcnt vmcnt(48)")
    stamp(a, 6)
    for i in wreads(0): a(i)
    a("s_mov_b32 s61, 0")
    a.raw(".p2align 6")
    a.label("L2_loop")
    for n in range(8):
        mf = [mfma(ar(AC2(nb, qb)), vr(WF(n & 1, nb)), vr(OF(n, qb)), ar(AC2(nb, qb))) for nb in range(4) for qb in range(4)]
        fill = {("pre", 0): ["s_waitcnt vmcnt(40) lgkmcnt(0)"]}
        spread(fill, wreads(n + 1), list(range(0, 8)))
        spread(fill, issue((n + 7) % 8), list(range(1, 16)))
        emit_gaps(a, mf, fill)
    a("s_add_u32 s61, s61, 1"); a("s_cmp_lt_u32 s61, 4"); a("s_cbranch_scc1 L2_loop")
    stamp(a, 7)
    a("s_waitcnt vmcnt(0) lgkmcnt(0)"); a("s_barrier")
    a(f"s_lshl_b32 s3, s{sW}, 14")
    a("v_lshlrev_b32 v11, 8, v4"); a("v_add_u32 v11, s3, v11")
    for nb in range(4):
        a(f"v_add_u32 v9, {4*nb}, v3"); a("v_xor_b32 v9, v9, v4"); a(f"v_lshl_add_u32 v{OA+nb}, v9, 4, v11")
    for nb in range(4):
        for qb in range(4): a(f"ds_write_b128 v{OA+nb}, {ar(AC2(nb, qb))} offset:{qb * 4096}")
    a("v_lshrrev_b32 v10, 2, v2")
    a(f"s_lshl_b32 s3, s{sW}, 12")
    a("v_lshlrev_b32 v11, 8, v10"); a("v_add_u32 v11, s3, v11")
    for j in range(4):
        a(f"v_lshl_add_u32 v9, v6, 2, {j}"); a("v_xor_b32 v9, v9, v10"); a(f"v_lshl_add_u32 v{24+j}, v9, 4, v11")
    a("s_waitcnt lgkmcnt(0)"); a("s_barrier")
    for p in range(4):
        for j in range(4): a(f"ds_read_b128 {vr(64 + 16*p + 4*j)}, v{24+j} offset:{p * 16384}")
    a(f"s_lshl_b32 s3, s42, 2"); a(f"s_add_u32 s3, s3, s{sW}"); a("s_lshl_b32 s3, s3, 14"); a("s_add_u32 s3, s3, s64")
    a("v_lshlrev_b32 v11, 10, v10"); a("v_lshl_add_u32 v11, v6, 5, v11")
    a("s_waitcnt lgkmcnt(0)")
    for j in range(16): a(f"v_add_f32 v{64+j}, v{64+j}, v{80+j}")
    for j in range(16): a(f"v_add_f32 v{96+j}, v{96+j}, v{112+j}")
    for j in range(16): a(f"v_add_f32 v{64+j}, v{64+j}, v{96+j}")
    for j in range(8): a(f"v_cvt_pk_bf16_f32 v{128+j}, v{64+2*j}, v{65+2*j}")
    a("buffer_store_dwordx4 v[128:131], v11, s[28:31], s3 offen")
    a("buffer_store_dwordx4 v[132:135], v11, s[28:31], s3 offen offset:16")
    a("s_waitcnt vmcnt(0)")
    stamp(a, 8)
    a.label("L2_end")
    a("s_endpgm")

def main(path):
    a = Asm()
    a.raw(f"; @launch kernel={K1} grid=(256,1,1) block=(256,1,1) lds=163840")
    a.raw(f"; @launch kernel={K2} grid=(256,1,1) block=(256,1,1) lds=131072")
    a.raw('.amdgcn_target "amdgcn-amd-amdhsa--gfx950"')
    n0 = len(a.lines); gen_k1(a); p1 = hazard.check(a.lines[n0:])
    n0 = len(a.lines); gen_k2(a); p2 = hazard.check(a.lines[n0:])
    kernel_desc(a, K1, 512, 256)
    kernel_desc(a, K2, 320, 256)
    for p in p1 + p2: print("HAZARD", p)
    open(path, "w").write(a.text())

if __name__ == "__main__":
    main(sys.argv[1])
```

```python
import sys, struct, math
from asm import *
import hazard

def opt(name, default=None):
    for x in sys.argv:
        if x == "--" + name: return True
        if x.startswith("--" + name + "="): return x.split("=", 1)[1]
    return default
STAMP = opt("stamp"); FINE = opt("fine")
PMAP = int(opt("pmap", 1))
BLK = int(opt("blk", 16))
XPOL = " " + opt("xpol", "nt") if opt("xpol", "nt") != "d" else ""
OST = " " + opt("ost", "sc1").replace("+", " ") if opt("ost", "sc1") != "d" else ""
PF = opt("pf", "d")
NSTAGE = int(opt("nstage", 16))

def f2u(x): return struct.unpack("<I", struct.pack("<f", x))[0]
def vr(b, n=4): return f"v[{b}:{b+n-1}]"
def ar(b, n=4): return f"a[{b}:{b+n-1}]"
def mfma(d, a, b, c): return f"v_mfma_f32_16x16x32_bf16 {d}, {a}, {b}, {c}"

KA, VA, DK, DV, XA, WA, DX, DW = 16, 20, 28, 32, 36, 38, 46, 240
LANE16, NONCE, PFD, DWO = 15, 242, 244, 245
Q0, ACC = 48, 112
def Q(t, qb): return Q0 + 16 * qb + 4 * t
def AC(db, qb): return ACC + 16 * db + 4 * qb
def S(kb, qb): return 112 + 8 * qb + 4 * kb
def P(par, qb): return 144 + 16 * par + 4 * qb
def CI(qb): return 176 + 4 * qb
def O(db, qb): return 16 * db + 4 * qb
def L(qb): return 128 + 4 * qb
ONES = 144
def KF(kb, t): return 160 + 16 * kb + 4 * t
def VF(db): return 192 + 4 * db
def AF(f, db): return 160 + 32 * f + 4 * db
def BF(f, qb): return 224 + 16 * f + 4 * qb
SX, SW, SK, SV, SO, SWO, SFL, SDB = 20, 24, 28, 32, 36, 80, 84, 88
sW, sB, sH = 40, 41, 42
sXO, sWO = 44, 52
sKo, sVo, mK, mV, sC, sT, sFB = 56, 57, 58, 59, 60, 61, 62
sW8K, sW4K, sRot, sEv, sCB, sR, sCT = 63, 64, 68, 43, 92, 93, 94
XBUF = [32768, 131072, 65536]
WBUF = [114688, 98304, 16384]
GRAY = [0, 1, 3, 2]
WSLOT = [131072, 147456, 0, 16384, 49152, 32768, 65536, 81920, 114688, 98304]
FLAGS_OFF = 0x1000000
STAMP_OFF = 0x2000000

def srd(a, d, lo, hi, nrec):
    a(f"s_mov_b32 s{d}, {lo}"); a(f"s_mov_b32 s{d+1}, {hi}")
    a(f"s_mov_b32 s{d+2}, {nrec}"); a(f"s_mov_b32 s{d+3}, 0x20000")
def dma(voff, s, soff, off, pol=" nt"):
    return f"buffer_load_dwordx4 v{voff}, s[{s}:{s+3}], s{soff} offen offset:{off}{pol} lds"

def stage_next():
    return [f"s_add_u32 s{sRot}, s{sRot}, 1", f"s_and_b32 s{sRot}, s{sRot}, 7"] + stage_base()
def stage_base():
    return [f"s_lshl_b32 s69, s{sRot}, 7", f"s_add_u32 s{SX}, s4, s69", f"s_addc_u32 s{SX+1}, s5, 0",
            f"s_lshl_b32 s69, s{sRot}, 19", f"s_add_u32 s{SW}, s10, s69", f"s_addc_u32 s{SW+1}, s11, 0"]
def stage_dma(s):
    o = [f"s_add_u32 m0, s{sW4K}, {WBUF[s % 3]}"]
    for jj in range(4): o.append(dma(DW + (jj >> 1), SW, sWO + jj, jj * 1024, XPOL))
    for jj in range(8):
        if jj % 4 == 0: o.append(f"s_add_u32 m0, s{sW8K}, {XBUF[s % 3] + (jj // 4) * 4096}")
        o.append(dma(DX + (jj & 1), SX, sXO + jj, (jj & 3) * 1024, XPOL))
    return o + stage_next()
def k_tile_dma(T):
    o = [f"s_add_u32 m0, s{sW4K}, {GRAY[T % 4] * 16384}", f"s_add_u32 s65, s{sW4K}, {T * 16384}"]
    return o + [dma(DK + jj, SK, 65, jj * 1024) for jj in range(4)]
def v_tile_dma(T):
    o = [f"s_add_u32 m0, s{sW4K}, {65536 + GRAY[T % 4] * 16384}", f"s_add_u32 s66, s{sW4K}, {T * 16384}"]
    return o + [dma(DV + jj, SV, 66, jj * 1024) for jj in range(4)]
def kappa(dst, n, shift):
    return [f"s_add_u32 s{dst}, s{sCB}, {n & (BLK - 1)}", f"s_and_b32 s{dst}, s{dst}, {BLK - 1}",
            f"s_or_b32 s{dst}, s{dst}, {n & ~(BLK - 1)}", f"s_lshl_b32 s{dst}, s{dst}, {shift}"]
def wo_dma(n, sreg=65):
    return kappa(sreg, n, 15) + [f"s_add_u32 m0, s{sW4K}, {WSLOT[n % 10]}", "s_nop 0"] + \
           [dma(DWO + jj, SWO, sreg, jj * 1024) for jj in range(4)]

def kread(step, n):
    kb, t = n >> 2, n & 3
    return f"ds_read_b128 {ar(KF(kb, t))}, v{KA + t} offset:{step * 8192 + kb * 4096}"
def vread(step, n):
    db, u = n >> 1, n & 1
    return f"ds_read_b64_tr_b16 {ar(VF(db) + 2 * u, 2)}, v{VA + db} offset:{step * 8192 + u * 4096}"

def emit_gaps(a, mf, fill):
    for g, m in enumerate(mf):
        for p in fill.get(("pre", g), []): a(p)
        a(m)
        for p in fill.get(g, []): a(p)
def spread(fill, items, gaps):
    assert len(items) <= len(gaps), (len(items), len(gaps))
    for it, g in zip(items, gaps): fill.setdefault(g, []).append(it)

SPIN = opt("spin")
def stamp(a, idx, have=False):
    if SPIN is not None and int(SPIN) == idx:
        a("s_memrealtime s[96:97]"); a("s_waitcnt lgkmcnt(0)")
    if SPIN is not None and idx == 10:
        a("s_sub_u32 s96, s96, s98"); a("s_add_u32 s96, s96, 10000")
        a.label("L_spin")
        a("s_memrealtime s[70:71]"); a("s_waitcnt lgkmcnt(0)"); a("s_sub_u32 s70, s70, s98")
        a("s_cmp_lt_u32 s70, s96"); a("s_cbranch_scc1 L_spin")
    if not STAMP: return
    if not have: a("s_memrealtime s[70:71]"); a("s_memtime s[72:73]")
    a("s_waitcnt lgkmcnt(0)")
    a("v_mov_b32 v250, s70"); a("v_mov_b32 v251, s72"); a("v_mov_b32 v252, s74")
    a(f"buffer_store_dwordx2 v[250:251], v252, s[76:79], 0 offen offset:{idx * 8}")

def sm_pos(e): return 11 + 2 * e + (e >> 3)
def sm_exp(e): r = S((e >> 2) & 1, e >> 3) + (e & 3); return f"v_exp_f32 v{r}, v{r}"
def sm_cvt(e, par):
    r = S((e >> 2) & 1, e >> 3) + (e & 3)
    return f"v_cvt_pk_bf16_f32 v{P(par, e >> 3) + ((e >> 1) & 3)}, v{r-1}, v{r}"

def attn_iter(a, odd):
    par = odd
    mf = []
    for g in range(32):
        qb, kb, t = g >> 3, (g >> 2) & 1, g & 3
        mf.append(mfma(vr(S(kb, qb)), ar(KF(kb, t)), vr(Q(t, qb)), vr(CI(qb)) if t == 0 else vr(S(kb, qb))))
    for qb in range(4):
        for db in range(8): mf.append(mfma(ar(O(db, qb)), ar(VF(db)), vr(P(par, qb)), ar(O(db, qb))))
        mf.append(mfma(ar(L(qb)), ar(ONES), vr(P(par, qb)), ar(L(qb))))
    valu, mem = {}, {}
    slots = {g: 2 for g in range(68)}
    for e in range(32):
        p = sm_pos(e) % 68
        valu.setdefault(p, []).append(sm_exp(e)); slots[p] -= 2
        if e & 1:
            c = sm_pos(e) + 1; pp = 1 - par
            if c >= 68: c -= 68; pp = par
            valu.setdefault(c, []).append(sm_cvt(e, pp)); slots[c] -= 1
    def free(lo, hi, per=2):
        out = []
        for g in range(lo, hi): out += [g] * min(per, slots[g])
        return out
    def take(items, gaps):
        assert len(gaps) >= len(items), (items, gaps)
        for it, g in zip(items, gaps):
            slots[g] -= 1
            (mem if it.startswith(("ds_", "buffer_", "s_")) else valu).setdefault(g, []).append(it)
    slots[31] -= 1; slots[67] -= 1
    take([vread(odd, n) for n in range(16)], free(1, 31))
    take([kread(odd, n) for n in range(8)], free(33, 60, 1))
    if not odd:
        take([f"v_xor_b32 v{KA + t}, s{sC}, v{KA + t}" for t in range(4)], free(20, 31))
        d = [f"s_mov_b32 m0, s{mK}"] + [dma(DK + jj, SK, sKo, jj * 1024) for jj in range(4)] + \
            [f"s_add_u32 s{sKo}, s{sKo}, 0x4000", f"s_xor_b32 s{mK}, s{mK}, s{sC}", f"s_cmp_eq_u32 s{sT}, 15"]
        take(d, free(43, 67, 1))
    else:
        take([f"v_xor_b32 v{VA + db}, s{sC}, v{VA + db}" for db in range(8)], free(33, 67, 1))
        d = [f"s_mov_b32 m0, s{mV}"] + [dma(DV + jj, SV, sVo, jj * 1024) for jj in range(4)] + \
            [f"s_add_u32 s{sVo}, s{sVo}, 0x4000", f"s_add_u32 s{sT}, s{sT}, 1"]
        take(d, free(24, 67, 1))
    fill = {g: mem.get(g, []) + valu.get(g, []) for g in range(68)}
    fill[("pre", 32)] = ["s_waitcnt lgkmcnt(0)"]
    fill[("pre", 0)] = ["s_waitcnt lgkmcnt(0)"] if odd else ["s_waitcnt vmcnt(16) lgkmcnt(0)", "s_barrier"]
    if not odd:
        fill[0] = fill[0] + [f"s_cmp_eq_u32 s{sT}, s{sEv}", "s_cbranch_scc1 L_event", "L_event_ret:"]
    else:
        fill[67] += [f"s_xor_b32 s{sC}, s{sC}, 0xc000", f"s_xor_b32 s{mV}, s{mV}, s{sC}"]
    for g, m in enumerate(mf):
        for p in fill.get(("pre", g), []): a(p)
        a(m)
        for p in fill.get(g, []):
            if p.endswith(":"): a.label(p[:-1])
            else: a(p)

def xlane(a, op, x, y):
    a(f"v_mov_b32 v{y}, v{x}"); a("s_nop 1"); a(f"v_permlane16_swap_b32 v{x}, v{y}"); a("s_nop 0")
    a(f"{op} v{x}, v{x}, v{y}")
    a(f"v_mov_b32 v{y}, v{x}"); a("s_nop 1"); a(f"v_permlane32_swap_b32 v{x}, v{y}"); a("s_nop 0")
    a(f"{op} v{x}, v{x}, v{y}")
def qk_plain(a):
    for g in range(32):
        qb, kb, t = g >> 3, (g >> 2) & 1, g & 3
        a(mfma(vr(S(kb, qb)), ar(KF(kb, t)), vr(Q(t, qb)), "0" if t == 0 else vr(S(kb, qb))))

def kv_setup(a):
    srd(a, SK, "s6", "s7", 262144); srd(a, SV, "s8", "s9", 262144)
    for jj in range(4):
        a(f"v_add_u32 v9, {4*jj}, v3"); a("v_xor_b32 v9, v9, v4"); a("v_lshlrev_b32 v9, 4, v9")
        a(f"v_lshl_add_u32 v{DK+jj}, v3, 8, v9")
    for p in range(2):
        a(f"v_add_u32 v9, {4*p}, v3"); a("v_lshlrev_b32 v9, 1, v9"); a("v_xor_b32 v9, v9, v4"); a("v_lshlrev_b32 v9, 4, v9")
        a(f"v_lshl_add_u32 v{DV+p}, v3, 8, v9"); a(f"v_mov_b32 v{DV+2+p}, v{DV+p}")

class VM:
    def __init__(s): s.tags = []
    def add(s, ins, tag):
        for i in ins:
            if i.startswith("buffer_"): s.tags.append(tag)
        return ins
    def wait(s, *tags):
        last = max(i for i, t in enumerate(s.tags) if t in tags)
        n = len(s.tags) - 1 - last
        assert n <= 63
        return n

def gen(a):
    kernel_begin(a, KNAME)
    if STAMP: a("s_memrealtime s[70:71]"); a("s_memtime s[72:73]")
    if SPIN is not None: a("s_memrealtime s[98:99]"); a("s_waitcnt lgkmcnt(0)"); a("s_mov_b32 s96, s98")
    a(f"""
    s_cmp_ge_u32 s2, 256
    s_cbranch_scc1 L_end
    s_load_dwordx16 s[4:19], s[0:1], 0
    v_lshrrev_b32 v1, 6, v0
    v_and_b32 v2, 63, v0
    v_readfirstlane_b32 s{sW}, v1
    """)
    if PMAP == 1:
        a(f"""
        s_and_b32 s3, s2, 1
        s_lshl_b32 s3, s3, 2
        s_bfe_u32 s{sB}, s2, 0x20003
        s_lshl_b32 s{sRot}, s{sB}, 1
        s_add_u32 s{sB}, s{sB}, s3
        s_bfe_u32 s3, s2, 0x20001
        s_lshl_b32 s3, s3, 3
        s_lshr_b32 s{sH}, s2, 5
        s_add_u32 s{sRot}, s{sRot}, s{sH}
        s_add_u32 s{sH}, s{sH}, s3
        s_and_b32 s{sRot}, s{sRot}, 7
        """)
    else:
        a(f"s_and_b32 s{sB}, s2, 7"); a(f"s_lshr_b32 s{sH}, s2, 3"); a(f"s_and_b32 s{sRot}, s{sH}, 7")
    a(f"""
    s_lshl_b32 s{sW8K}, s{sW}, 13
    s_lshl_b32 s{sW4K}, s{sW}, 12
    v_lshrrev_b32 v3, 4, v2
    v_and_b32 v4, 15, v2
    v_lshrrev_b32 v7, 3, v2
    v_and_b32 v8, 7, v2
    """)
    for p in range(2):
        a(f"v_add_u32 v9, {4*p}, v3"); a("v_lshlrev_b32 v10, 1, v9"); a("v_xor_b32 v10, v10, v4"); a("v_lshlrev_b32 v10, 4, v10")
        a(f"v_lshl_add_u32 v{DW+p}, v3, 13, v10")
        a("v_xor_b32 v10, v9, v8"); a("v_lshlrev_b32 v10, 4, v10")
        a(f"v_lshl_add_u32 v{DX+p}, v7, 10, v10")
    a(f"s_lshl_b32 s3, s{sW}, 16")
    for jj in range(8): a(f"s_add_u32 s{sXO+jj}, s3, {(jj >> 2) * 32768 + (jj & 3) * 7168}")
    a(f"s_lshl_b32 s3, s{sW}, 17")
    for jj in range(4): a(f"s_add_u32 s{sWO+jj}, s3, {jj * 31744}")
    a(f"""
    s_mul_i32 s65, s{sB}, 245760
    s_lshl_b32 s66, s{sH}, 8
    s_mov_b32 s{SX+2}, 244864
    s_mov_b32 s{SX+3}, 0x20000
    s_mov_b32 s{SW+2}, 516352
    s_mov_b32 s{SW+3}, 0x20000
    s_waitcnt lgkmcnt(0)
    s_add_u32 s4, s4, s65
    s_addc_u32 s5, s5, 0
    s_add_u32 s10, s10, s66
    s_addc_u32 s11, s11, 0
    """)
    for i in stage_base(): a(i)
    def seq(ins):
        for i in ins:
            a(i)
            if " m0," in i: a("s_nop 0")
    seq(stage_dma(0))
    srd(a, SDB, "s16", "s17", 256)
    a("s_lshl_b32 s3, s2, 2"); a(f"s_or_b32 s3, s3, s{sW}"); a("s_cmp_lg_u32 s3, 0"); a("s_cbranch_scc1 L_notag")
    a("s_memrealtime s[66:67]"); a("v_mov_b32 v9, 0"); a("s_waitcnt lgkmcnt(0)")
    a("s_bitset1_b32 s67, 31"); a("v_mov_b32 v10, s66"); a("v_mov_b32 v11, s67")
    a(f"buffer_store_dwordx2 v[10:11], v9, s[{SDB}:{SDB+3}], 0 offen sc1")
    a("s_waitcnt vmcnt(0)")
    a.label("L_notag")
    seq(stage_dma(1))
    a(f"""
    s_lshl_b32 s3, s{sB}, 5
    s_add_u32 s3, s3, s{sH}
    s_lshl_b32 s3, s3, 18
    s_add_u32 s6, s6, s3
    s_addc_u32 s7, s7, 0
    s_add_u32 s8, s8, s3
    s_addc_u32 s9, s9, 0
    """)
    kv_setup(a)
    seq(stage_dma(2))
    for i in k_tile_dma(0): a(i)
    a(f"""
    s_lshl_b32 s3, s{sB}, 2
    s_add_u32 s3, s3, s{sW}
    s_lshl_b32 s3, s3, 5
    s_add_u32 s3, s3, s{sH}
    s_lshl_b32 s3, s3, 14
    s_add_u32 s66, s18, s3
    s_addc_u32 s67, s19, 0
    """)
    srd(a, SO, "s66", "s67", 16384)
    a(f"s_add_u32 s66, s18, {FLAGS_OFF}"); a("s_addc_u32 s67, s19, 0")
    srd(a, SFL, "s66", "s67", 32768)
    a(f"""
    s_bfe_u32 s{sR}, s2, 0x20003
    s_lshr_b32 s{sCT}, s2, 5
    s_mul_i32 s{sCB}, s{sCT}, {BLK // 8}
    s_lshl_b32 s3, s{sW}, 20
    s_lshl_b32 s65, s{sCT}, 7
    s_add_u32 s3, s3, s65
    s_add_u32 s66, s12, s3
    s_addc_u32 s67, s13, 0
    """)
    srd(a, SWO, "s66", "s67", 1023 * 1024 + 128)
    if STAMP:
        a(f"s_add_u32 s66, s18, {STAMP_OFF}"); a("s_addc_u32 s67, s19, 0")
        srd(a, 76, "s66", "s67", 0x100000)
        a(f"s_lshl_b32 s74, s2, 2"); a(f"s_add_u32 s74, s74, s{sW}"); a("s_lshl_b32 s74, s74, 8")
        stamp(a, 0, have=True)
    a("v_bfe_u32 v5, v2, 2, 2"); a("v_and_b32 v6, 3, v2")
    a("v_lshlrev_b32 v9, 1, v3"); a("v_xor_b32 v9, v9, v8"); a("v_lshlrev_b32 v9, 4, v9")
    a(f"v_lshl_add_u32 v{DWO}, v7, 10, v9")
    for jj in range(1, 4): a(f"v_add_u32 v{DWO+jj}, {jj * 7168}, v{DWO}")
    for t in range(4):
        a(f"v_add_u32 v9, {4*t}, v3"); a("v_xor_b32 v9, v9, v4"); a("v_lshlrev_b32 v9, 4, v9")
        a(f"v_lshl_add_u32 v{KA+t}, v4, 8, v9")
    a("v_lshl_add_u32 v11, v3, 2, v5"); a("v_and_b32 v12, 7, v11"); a("v_lshlrev_b32 v13, 3, v6")
    a("v_lshl_add_u32 v11, v11, 8, v13"); a("v_add_u32 v11, 0x10000, v11")
    for db in range(8):
        a(f"v_xor_b32 v9, {db}, v12"); a(f"v_lshl_add_u32 v{VA+db}, v9, 5, v11")
    a("v_lshl_add_u32 v11, v3, 3, v5"); a("v_lshl_add_u32 v11, v11, 8, v13"); a(f"v_add_u32 v11, {WBUF[0]}, v11")
    a("v_and_b32 v12, 1, v3"); a("v_lshl_add_u32 v12, v12, 2, v5")
    for db in range(8):
        a(f"v_xor_b32 v9, {db}, v12"); a(f"v_lshl_add_u32 v{WA+db}, v9, 5, v11")
    a("v_lshrrev_b32 v12, 1, v4")
    a(f"s_add_u32 s3, s{sW8K}, {XBUF[0]}")
    a("v_lshlrev_b32 v11, 7, v4"); a("v_add_u32 v11, s3, v11")
    for t in range(2):
        a(f"v_add_u32 v9, {4*t}, v3"); a("v_xor_b32 v9, v9, v12"); a(f"v_lshl_add_u32 v{XA+t}, v9, 4, v11")
    a(f"v_lshlrev_b32 v{LANE16}, 4, v2")
    a(f"s_mov_b32 s{sFB}, 0")
    a("v_mov_b32 v14, 0x3f803f80")
    def qreads(n):
        f = t = n & 1
        o = [f"ds_read_b128 {ar(BF(f, qb))}, v{XA+t} offset:{qb * 2048}" for qb in range(4)]
        for db in range(8):
            for v in range(2): o.append(f"ds_read_b64_tr_b16 {ar(AF(f, db) + 2 * v, 2)}, v{WA+db} offset:{t * 8192 + v * 1024}")
        return o
    a("s_waitcnt vmcnt(28)")
    a("s_barrier")
    stamp(a, 1)
    for i in qreads(0): a(i)
    zinit = [f"v_accvgpr_write_b32 a{r}, 0" for r in range(144)] + [f"v_accvgpr_write_b32 a{ONES+r}, v14" for r in range(4)]
    pend = []
    for n in range(16):
        f, s = n & 1, n >> 1
        mf = [mfma(vr(AC(db, qb)), ar(AF(f, db)), ar(BF(f, qb)), "0" if n == 0 else vr(AC(db, qb)))
              for db in range(8) for qb in range(4)]
        fill = {("pre", 0): ["s_waitcnt lgkmcnt(0)"]}
        if n & 1 and n < 15:
            fill[("pre", 0)] = [f"s_waitcnt vmcnt({16 if n == 1 else 12}) lgkmcnt(0)", "s_barrier"]
            assert not pend
            dx = (XBUF[(s + 1) % 3] - XBUF[s % 3]) & 0xffffffff
            dw = (WBUF[(s + 1) % 3] - WBUF[s % 3]) & 0xffffffff
            upd = [f"v_add_u32 v{XA+t}, {dx:#x}, v{XA+t}" for t in range(2)] + [f"v_add_u32 v{WA+db}, {dw:#x}, v{WA+db}" for db in range(8)]
            spread(fill, upd, [0, 0, 1, 1, 2, 2, 3, 3, 4, 4])
            spread(fill, qreads(n + 1), list(range(5, 25)))
            if s + 3 <= 7: pend = stage_dma(s + 3)
            elif s == 5: pend = k_tile_dma(1) + v_tile_dma(0) + v_tile_dma(1)
            else: pend = k_tile_dma(2) + k_tile_dma(3) + v_tile_dma(2)
            g0 = 5
        elif n < 15:
            spread(fill, qreads(n + 1), list(range(0, 20)))
            g0 = 0
        else:
            spread(fill, [kread(0, k) for k in range(8)], list(range(4, 12)))
            g0 = 0
        g, cnt, used = g0, 0, set()
        while pend and g < 32 and (cnt < 6 or not (n & 1)):
            it = pend.pop(0); fill.setdefault(g, []).append(it); used.add(g)
            if it.startswith("buffer_"): cnt += 1; g += 3 if n & 1 else 2
            else: g += 1
        for g in range(5, 32):
            if zinit and g not in used: fill.setdefault(g, []).append(zinit.pop(0))
        emit_gaps(a, mf, fill)
        if n & 1 and FINE: stamp(a, 16 + s)
    assert not zinit and not pend
    stamp(a, 2)
    cs = f2u(math.log2(math.e) / math.sqrt(128.0))
    a(f"s_mov_b32 s66, {cs:#x}"); a(f"s_mov_b32 s67, {cs:#x}")
    a("s_nop 4")
    for qb in range(4):
        for db in range(8):
            for i in range(2): a(f"v_pk_mul_f32 {vr(AC(db, qb) + 2*i, 2)}, {vr(AC(db, qb) + 2*i, 2)}, s[66:67]")
        for db in range(8):
            for i in range(2): a(f"v_cvt_pk_bf16_f32 v{Q(db >> 1, qb) + 2*(db & 1) + i}, v{AC(db, qb) + 2*i}, v{AC(db, qb) + 2*i + 1}")
        for sw in ("32", "16"):
            for t in range(4):
                for i in range(2): a(f"v_permlane{sw}_swap_b32 v{Q(t, qb) + i}, v{Q(t, qb) + 2 + i}")
    a.label("L_attn")
    a(f"""
    s_mov_b32 s{sC}, 0x4000
    s_mov_b32 s{sT}, 0
    s_mov_b32 s{sEv}, 1
    s_add_u32 s{sKo}, s{sW4K}, 0x10000
    s_add_u32 s{sVo}, s{sW4K}, 0xc000
    s_mov_b32 s{mK}, s{sW4K}
    s_add_u32 s{mV}, s{sW4K}, {65536 + GRAY[3] * 16384}
    s_waitcnt lgkmcnt(0)
    """)
    qk_plain(a)
    for k in range(8): a(kread(1, k))
    a(f"s_cmp_lg_u32 s{sFB}, 0"); a("s_cbranch_scc1 L_havemax")
    for qb in range(4):
        s0, s1 = S(0, qb), S(1, qb)
        a(f"v_max3_f32 v1, v{s0}, v{s0+1}, v{s0+2}"); a(f"v_max3_f32 v1, v1, v{s0+3}, v{s1}")
        a(f"v_max3_f32 v1, v1, v{s1+1}, v{s1+2}"); a(f"v_max_f32 v1, v1, v{s1+3}")
        xlane(a, "v_max_f32", 1, 9)
        for r in range(4): a(f"v_sub_f32 v{CI(qb)+r}, 0, v1")
    a.label("L_havemax")
    for qb in range(4):
        for r in range(8): a(f"v_add_f32 v{S(0, qb)+r}, v{S(0, qb)+r}, v{CI(qb)}")
    for e in range(32):
        if sm_pos(e) < 68: a(sm_exp(e))
    for e in range(32):
        if e & 1 and sm_pos(e) + 1 < 68: a(sm_cvt(e, 0))
    stamp(a, 3)
    a.raw(".p2align 6")
    a.label("L_loop")
    attn_iter(a, 0)
    a("s_cbranch_scc1 L_tail")
    attn_iter(a, 1)
    a("s_branch L_loop")
    a.label("L_event")
    for T in (4, 7, 12, 13, 14): a(f"s_cmp_eq_u32 s{sT}, {T}"); a(f"s_cbranch_scc1 L_ev{T}")
    a(f"s_cmp_eq_u32 s{sT}, 15"); a("s_cbranch_scc1 L_ev15")
    def l2pf(j):
        a(f"v_add_u32 v9, {8 * j + 8}, v7")
        a(f"v_add_u32 v10, s{sCB}, v9"); a(f"v_and_b32 v10, {BLK - 1}, v10"); a(f"v_and_b32 v9, {31 & ~(BLK - 1)}, v9")
        a("v_or_b32 v9, v9, v10"); a("v_lshl_add_u32 v9, v9, 5, v8"); a(f"s_lshl_b32 s3, s{sR}, 13")
        a("v_lshlrev_b32 v9, 10, v9")
        if PF != "no": a(f"buffer_load_dword v{PFD}, v9, s[{SWO}:{SWO+3}], s3 offen{' ' + PF if PF != 'd' else ''}")
    a("v_mov_b32 v9, 0")
    a(f"buffer_load_dwordx2 v[{NONCE}:{NONCE+1}], v9, s[{SDB}:{SDB+3}], 0 offen sc1")
    l2pf(0); a(f"s_mov_b32 s{sEv}, 4"); a("s_branch L_event_ret")
    a.label("L_ev4"); l2pf(1); a(f"s_mov_b32 s{sEv}, 7"); a("s_branch L_event_ret")
    a.label("L_ev7"); l2pf(2); a(f"s_mov_b32 s{sEv}, 12"); a("s_branch L_event_ret")
    a.label("L_ev12")
    for i in wo_dma(0) + wo_dma(1): a(i)
    for k in range(4): a(f"s_mov_b32 s{SK+k}, s{SWO+k}" if k < 3 else f"s_mov_b32 s{SK+3}, 0x20000")
    for jj in range(4): a(f"v_mov_b32 v{DK+jj}, v{DWO+jj}")
    for i in kappa(sKo, 2, 15): a(i)
    a(f"s_mov_b32 s{sEv}, 13"); a("s_branch L_event_ret")
    a.label("L_ev13")
    for k in range(4): a(f"s_mov_b32 s{SV+k}, s{SWO+k}" if k < 3 else f"s_mov_b32 s{SV+3}, 0x20000")
    for jj in range(4): a(f"v_mov_b32 v{DV+jj}, v{DWO+jj}")
    for i in kappa(sKo, 3, 15) + kappa(sVo, 6, 15): a(i)
    a(f"s_mov_b32 s{sEv}, 14"); a("s_branch L_event_ret")
    a.label("L_ev14")
    for i in kappa(sKo, 4, 15) + kappa(sVo, 7, 15): a(i)
    a(f"s_mov_b32 s{sEv}, 15"); a("s_branch L_event_ret")
    a.label("L_ev15")
    for i in kappa(sKo, 5, 15): a(i)
    a("s_branch L_event_ret")
    a.label("L_tail")
    for n in range(16): a(vread(1, n))
    for e in range(32):
        if sm_pos(e) >= 68: a(sm_exp(e))
    for e in range(32):
        if e & 1 and sm_pos(e) + 1 >= 68: a(sm_cvt(e, 1))
    a("s_waitcnt lgkmcnt(0)")
    for qb in range(4):
        a(mfma(ar(L(qb)), ar(ONES), vr(P(1, qb)), ar(L(qb))))
        for db in range(8): a(mfma(ar(O(db, qb)), ar(VF(db)), vr(P(1, qb)), ar(O(db, qb))))
    stamp(a, 4)
    a("s_mov_b32 s3, 0x4f800000")
    for qb in range(4): a(f"v_accvgpr_read_b32 v{112+qb}, a{L(qb)}")
    for qb in range(4): a(f"v_cmp_nge_f32 s[{66+2*qb}:{67+2*qb}], s3, v{112+qb}")
    for qb in range(4): a(f"v_rcp_f32 v{112+qb}, v{112+qb}")
    a("s_or_b64 s[66:67], s[66:67], s[68:69]"); a("s_or_b64 s[70:71], s[70:71], s[72:73]")
    a("s_or_b64 s[66:67], s[66:67], s[70:71]")
    a("s_cselect_b32 s3, 1, 0")
    a(f"s_lshl_b32 s65, s{sW}, 2"); a(f"s_add_u32 s65, s65, {WSLOT[8]}")
    a("v_mov_b32 v1, s3"); a("v_lshlrev_b32 v9, 12, v6"); a("v_add_u32 v9, s65, v9"); a("ds_write_b32 v9, v1")
    k = 0
    for qb in range(4):
        for s in range(4):
            t0 = 120 + 8 * (k % 4); d0 = 152 + 4 * (k % 4); k += 1
            for j in range(8): a(f"v_accvgpr_read_b32 v{t0+j}, a{O(2*s + (j >> 2), qb) + (j & 3)}")
            for j in range(8): a(f"v_mul_f32 v{t0+j}, v{t0+j}, v{112+qb}")
            for j in range(4): a(f"v_cvt_pk_bf16_f32 v{d0+j}, v{t0+2*j}, v{t0+2*j+1}")
            a(f"s_mov_b32 s3, {(s * 4 + qb) * 1024}")
            a(f"buffer_store_dwordx4 {vr(d0)}, v{LANE16}, s[{SO}:{SO+3}], s3 offen{OST}")
    stamp(a, 5)
    OA = 16
    RA = lambda n, nb: (f"a[{64 + 16*n + 4*nb}:{64 + 16*n + 4*nb + 3}]" if n < 12 else vr(176 + 16 * (n - 12) + 4 * nb))
    def RAh(n, nb, u):
        b = 64 + 16 * n + 4 * nb + 2 * u
        return f"a[{b}:{b+1}]" if n < 12 else vr(176 + 16 * (n - 12) + 4 * nb + 2 * u, 2)
    NOF = 6
    OF = lambda n, qb: 48 + 16 * (n % NOF) + 4 * qb
    WF = lambda n, nb: 144 + 16 * (n & 1) + 4 * nb
    AC2 = lambda nb, qb: 16 * nb + 4 * qb
    def wreads(n):
        base = WSLOT[n % 10]; win, off = base >> 16, base & 0xffff
        return [f"ds_read_b64_tr_b16 {RAh(n, nb, u) if n < NSTAGE else vr(WF(n, nb) + 2 * u, 2)}, v{OA + 4*win + nb} offset:{off + u * 2048}"
                for nb in range(4) for u in range(2)]
    a(f"s_add_u32 s3, s{sW4K}, {WSLOT[8]}"); a("v_mov_b32 v9, s3")
    a("s_waitcnt vmcnt(0) lgkmcnt(0)")
    a("s_barrier")
    a("ds_read_b128 v[120:123], v9")
    a("s_waitcnt lgkmcnt(0)")
    a("v_or_b32 v120, v120, v121"); a("v_or_b32 v122, v122, v123"); a("v_or_b32 v120, v120, v122"); a("s_nop 0")
    a(f"v_readfirstlane_b32 s3, v120"); a("s_nop 3"); a(f"s_andn2_b32 s3, s3, s{sFB}"); a("s_cmp_lg_u32 s3, 0")
    a("s_cbranch_scc1 L_fallback")
    a("s_mov_b32 s65, 0")
    a.label("L_tagwait")
    a(f"v_readfirstlane_b32 s66, v{NONCE}"); a(f"v_readfirstlane_b32 s67, v{NONCE+1}"); a("s_nop 3")
    a("s_cmp_lg_u32 s67, 0"); a("s_cbranch_scc1 L_havetag")
    a("v_mov_b32 v9, 0")
    a(f"buffer_load_dwordx2 v[{NONCE}:{NONCE+1}], v9, s[{SDB}:{SDB+3}], 0 offen sc1")
    a("s_add_u32 s65, s65, 1"); a("s_cmp_ge_u32 s65, 0x100000"); a("s_cbranch_scc1 L_end")
    a("s_waitcnt vmcnt(0)"); a("s_branch L_tagwait")
    a.label("L_havetag")
    a(f"s_cmp_lg_u32 s{sW}, 0"); a("s_cbranch_scc1 L_noflag")
    a(f"s_lshl_b32 s3, s{sB}, 5"); a(f"s_add_u32 s3, s3, s{sH}"); a("s_lshl_b32 s3, s3, 7"); a("v_mov_b32 v9, 0")
    a("s_mov_b64 exec, 1")
    a(f"buffer_store_dwordx2 v[{NONCE}:{NONCE+1}], v9, s[{SFL}:{SFL+3}], s3 offen sc1")
    a("s_mov_b64 exec, -1")
    a.label("L_noflag")
    stamp(a, 6)
    a("v_lshl_add_u32 v11, v3, 2, v5"); a("v_bfe_u32 v12, v11, 1, 2")
    a("v_lshlrev_b32 v11, 7, v11"); a("v_lshl_add_u32 v11, v6, 3, v11"); a(f"v_add_u32 v11, s{sW4K}, v11")
    for nb in range(4):
        a(f"v_xor_b32 v9, {nb}, v12"); a(f"v_lshl_add_u32 v{OA+nb}, v9, 5, v11")
        a(f"v_add_u32 v{OA+4+nb}, 0x10000, v{OA+nb}"); a(f"v_add_u32 v{OA+8+nb}, 0x20000, v{OA+nb}")
    for i in wo_dma(8) + wo_dma(9): a(i)
    for n in range(8):
        for i in wreads(n): a(i)
        if n % 2 == 1:
            a("s_waitcnt lgkmcnt(0)")
            for i in wo_dma(n + 9) + wo_dma(n + 10): a(i)
    nxt = 18
    if NSTAGE == 16:
        for n in range(8, 16):
            if n % 2 == 0: a(f"s_waitcnt vmcnt(32)")
            for i in wreads(n): a(i)
            if n % 2 == 1:
                a("s_waitcnt lgkmcnt(0)")
                for i in wo_dma(n + 9) + wo_dma(n + 10): a(i)
        nxt = 26
    for r in range(64): a(f"v_accvgpr_write_b32 a{r}, 0")
    a(f"""
    s_and_b32 s65, s2, 7
    s_lshl_b32 s3, s65, 2
    s_add_u32 s3, s3, s{sR}
    s_lshl_b32 s3, s3, 2
    s_add_u32 s3, s3, s{sW}
    s_lshl_b32 s3, s3, 17
    s_add_u32 s68, s18, s3
    s_addc_u32 s69, s19, 0
    s_mul_i32 s3, s65, 245760
    s_add_u32 s14, s14, s3
    s_addc_u32 s15, s15, 0
    s_lshl_b32 s3, s65, 2
    s_add_u32 s3, s3, s{sW}
    s_lshl_b32 s65, s3, 10
    v_lshlrev_b32 v9, 7, v8
    """)
    srd(a, SO, "s68", "s69", 131072); srd(a, SX, "s14", "s15", 245760)
    stamp(a, 7)
    a("s_mov_b32 s68, 0")
    a.label("L_poll")
    a(f"buffer_load_dwordx2 v[10:11], v9, s[{SFL}:{SFL+3}], s65 offen sc1")
    a("s_waitcnt vmcnt(0)")
    a(f"v_cmp_ne_u64 vcc, v[10:11], v[{NONCE}:{NONCE+1}]")
    a("s_add_u32 s68, s68, 1"); a("s_cmp_ge_u32 s68, 0x100000"); a("s_cbranch_scc1 L_end")
    a("s_cbranch_vccz L_ready")
    a("s_sleep 2"); a("s_branch L_poll")
    a.label("L_ready")
    stamp(a, 8)
    vm = VM()
    def oload(n):
        return vm.add(kappa(66, n, 12) + [f"buffer_load_dwordx4 {vr(OF(n, qb))}, v{LANE16}, s[{SO}:{SO+3}], s66 offen offset:{qb * 1024} sc1" for qb in range(4)], ("o", n))
    for n in range(NOF - 1):
        for i in oload(n): a(i)
    if NSTAGE == 0:
        pass
    for n in range(32):
        A = lambda nb: RA(n, nb) if n < NSTAGE else vr(WF(n, nb))
        mf = [mfma(ar(AC2(nb, qb)), A(nb), vr(OF(n, qb)), ar(AC2(nb, qb))) for nb in range(4) for qb in range(4)]
        need = [("o", n)]
        rd = n + 1 < 32 and n + 1 >= NSTAGE
        if rd and ("w", n + 1) in vm.tags: need.append(("w", n + 1))
        fill = {("pre", 0): [f"s_waitcnt vmcnt({vm.wait(*need)}) lgkmcnt(0)"]}
        if rd: spread(fill, wreads(n + 1), list(range(0, 8)))
        late = []
        if n + NOF - 1 < 32: late += oload(n + NOF - 1)
        if n >= NSTAGE and n + 10 < 32 and n + 10 >= nxt: late += vm.add([i for i in wo_dma(n + 10) if i != "s_nop 0"], ("w", n + 10))
        spread(fill, late, [0, 1, 2, 3, 4, 5, 6, 7, 8, 8, 9, 9, 10, 11, 12, 13, 14, 15])
        emit_gaps(a, mf, fill)
    stamp(a, 9)
    a("s_barrier")
    a(f"s_lshl_b32 s3, s{sW}, 14")
    a("v_lshlrev_b32 v11, 8, v4"); a("v_add_u32 v11, s3, v11")
    for nb in range(4):
        a(f"v_add_u32 v9, {4*nb}, v3"); a("v_xor_b32 v9, v9, v4"); a(f"v_lshl_add_u32 v{OA+nb}, v9, 4, v11")
    for nb in range(4):
        for qb in range(4): a(f"ds_write_b128 v{OA+nb}, {ar(AC2(nb, qb))} offset:{qb * 4096}")
    a("v_lshrrev_b32 v10, 2, v2")
    a("v_lshlrev_b32 v11, 8, v10"); a(f"v_add_u32 v11, s{sW4K}, v11")
    for j in range(4):
        a(f"v_lshl_add_u32 v9, v6, 2, {j}"); a("v_xor_b32 v9, v9, v10"); a(f"v_lshl_add_u32 v{24+j}, v9, 4, v11")
    a("s_waitcnt lgkmcnt(0)"); a("s_barrier")
    for p in range(4):
        for j in range(4): a(f"ds_read_b128 {vr(64 + 16*p + 4*j)}, v{24+j} offset:{p * 16384}")
    a(f"s_lshl_b32 s3, s{sR}, 2"); a(f"s_add_u32 s3, s3, s{sW}"); a("s_lshl_b32 s3, s3, 14")
    a(f"s_lshl_b32 s65, s{sCT}, 7"); a("s_add_u32 s3, s3, s65")
    a("v_lshlrev_b32 v11, 10, v10"); a("v_lshl_add_u32 v11, v6, 5, v11")
    a("s_waitcnt lgkmcnt(8)")
    for j in range(16): a(f"v_add_f32 v{64+j}, v{64+j}, v{80+j}")
    a("s_waitcnt lgkmcnt(0)")
    for j in range(16): a(f"v_add_f32 v{96+j}, v{96+j}, v{112+j}")
    for j in range(16): a(f"v_add_f32 v{64+j}, v{64+j}, v{96+j}")
    for j in range(8): a(f"v_cvt_pk_bf16_f32 v{128+j}, v{64+2*j}, v{65+2*j}")
    a(f"buffer_store_dwordx4 v[128:131], v11, s[{SX}:{SX+3}], s3 offen")
    a(f"buffer_store_dwordx4 v[132:135], v11, s[{SX}:{SX+3}], s3 offen offset:16")
    if STAMP: a("s_waitcnt vmcnt(0)")
    stamp(a, 10)
    a("s_endpgm")
    a.label("L_fallback")
    a(f"s_mov_b32 s{sFB}, 1")
    kv_setup(a)
    for db in range(8): a(f"v_xor_b32 v{VA+db}, s{sC}, v{VA+db}")
    for qb in range(4): a(f"v_mov_b32 v{10+qb}, 0xff800000")
    a(f"s_mov_b32 s{sT}, 0"); a(f"s_mov_b32 s65, s{sW4K}"); a(f"s_mov_b32 m0, s{sW4K}")
    a("s_barrier")
    a.label("L_fb")
    for jj in range(4): a(dma(DK + jj, SK, 65, jj * 1024))
    a("s_waitcnt vmcnt(0)"); a("s_barrier")
    for st in range(2):
        for k in range(8): a(kread(st, k))
        a("s_waitcnt lgkmcnt(0)")
        qk_plain(a)
        a("s_nop 7")
        for qb in range(4):
            for r in range(0, 8, 2): a(f"v_max3_f32 v{10+qb}, v{10+qb}, v{S(0, qb)+r}, v{S(0, qb)+r+1}")
    a("s_barrier")
    a("s_add_u32 s65, s65, 0x4000"); a(f"s_add_u32 s{sT}, s{sT}, 1"); a(f"s_cmp_lt_u32 s{sT}, 16")
    a("s_cbranch_scc1 L_fb")
    for qb in range(4):
        xlane(a, "v_max_f32", 10 + qb, 9)
        for r in range(4): a(f"v_sub_f32 v{CI(qb)+r}, 0, v{10+qb}")
    for r in range(144): a(f"v_accvgpr_write_b32 a{r}, 0")
    for i in k_tile_dma(0) + k_tile_dma(1) + v_tile_dma(0) + v_tile_dma(1) + k_tile_dma(2) + k_tile_dma(3) + v_tile_dma(2): a(i)
    a("s_waitcnt vmcnt(24)"); a("s_barrier")
    for k in range(8): a(kread(0, k))
    a("s_branch L_attn")
    a.label("L_end")
    a("s_endpgm")

def main(path):
    a = Asm()
    a.raw("; @launch grid=(256,1,1) block=(256,1,1) lds=163840")
    a.raw('.amdgcn_target "amdgcn-amd-amdhsa--gfx950"')
    n0 = len(a.lines); gen(a); p1 = hazard.check(a.lines[n0:])
    kernel_desc(a, KNAME, 512, 256)
    for p in p1: print("HAZARD", p)
    open(path, "w").write(a.text())

if __name__ == "__main__":
    main(sys.argv[1])
```
